```python
import torch

def _softmax(x, axis=-1):
    return torch.softmax(x, dim=axis)
def _gelu(x):
    return torch.nn.functional.gelu(x, approximate="tanh")
def _silu(x):
    return torch.nn.functional.silu(x)
def _sigmoid(x):
    return torch.sigmoid(x)
def _layernorm(x, axis=-1, eps=1e-5):
    m = x.mean(dim=axis, keepdim=True)
    v = x.var(dim=axis, keepdim=True, unbiased=False)
    return (x - m) / torch.sqrt(v + eps)
def _scatter_add(tgt, idx, src, axis=0):
    return tgt.clone().index_add_(axis, idx, src)
def _segment_sum(src, seg, n):
    out = torch.zeros((n,) + src.shape[1:], dtype=src.dtype)
    return out.index_add_(0, seg, src)
def _pad(x, pw):
    flat = tuple(v for pair in reversed(pw) for v in pair)
    return torch.nn.functional.pad(x, flat)

kernel_name = 'concat_heads__mha_block__linear_kernel_hedgehog__prompt'

def setup_inputs():

    _w = (lambda a: (lambda t: t.to(torch.bfloat16) if t.is_floating_point() else t)(torch.as_tensor(a)))
    def _A_setup():
        B, S, D, H = 1, 2048, 640, 32
        return {
            "x": _w((lambda *s: torch.randn(*s, dtype=torch.bfloat16) * 0.2)(B, S, D)),
            "wqkv": _w((lambda *s: torch.randn(*s, dtype=torch.bfloat16) * 0.2)(D, 3 * D)),
            "wo": _w((lambda *s: torch.randn(*s, dtype=torch.bfloat16) * 0.05)(D, D)),
        }
    _A_in = _A_setup()

    def _B_setup():
        B, S, D, H = 1, 2048, 640, 32
        Dh = D // H
        return {
            "x": _w((lambda *s: torch.randn(*s, dtype=torch.bfloat16) * 0.4)(B, S, D)),
            "wqkv": _w((lambda *s: torch.randn(*s, dtype=torch.bfloat16) * 0.4)(D, 3 * D)),
            "w_phi": _w((lambda *s: torch.randn(*s, dtype=torch.bfloat16) * 0.4)(H, Dh, Dh) * (Dh ** -0.5)),
            "wo": _w((lambda *s: torch.randn(*s, dtype=torch.bfloat16) * 0.05)(D, D)),
        }
    _B_in = _B_setup()

    return {
        "A_x": _A_in["x"],
        "A_wqkv": _A_in["wqkv"],
        "A_wo": _A_in["wo"],
        "B_x": _B_in["x"],
        "B_wqkv": _B_in["wqkv"],
        "B_w_phi": _B_in["w_phi"],
        "B_wo": _B_in["wo"],
    }

def reference(A_x, A_wqkv, A_wo, B_x, B_wqkv, B_w_phi, B_wo):
    def _A_ref(x, wqkv, wo):
        B, S, D = x.shape
        H = 32
        Dh = D // H
        qkv = (lambda x, *d: x.permute(*d))((x @ wqkv).reshape(B, S, 3, H, Dh), 2, 0, 3, 1, 4)
        q, k, v = qkv[0], qkv[1], qkv[2]
        scores = torch.einsum("bhqd,bhkd->bhqk", q, k) * (Dh ** -0.5)
        p = _softmax(scores, axis=-1)
        o = torch.einsum("bhqk,bhkd->bhqd", p, v)
        return (lambda x, *d: x.permute(*d))(o, 0, 2, 1, 3).reshape(B, S, D) @ wo

    def _B_ref(x, wqkv, w_phi, wo):
        B, S, D = x.shape
        H = 32; Dh = D // H
        qkv = (lambda x, *d: x.permute(*d))((x @ wqkv).reshape(B, S, 3, H, Dh), 2, 0, 3, 1, 4)
        q, k, v = qkv[0], qkv[1], qkv[2]
        pq = torch.einsum("bhsd,hdf->bhsf", q, w_phi)
        pk = torch.einsum("bhsd,hdf->bhsf", k, w_phi)
        phi_q = torch.concatenate([_softmax(pq, axis=-1), _softmax(-pq, axis=-1)], axis=-1)
        phi_k = torch.concatenate([_softmax(pk, axis=-1), _softmax(-pk, axis=-1)], axis=-1)
        kv = torch.einsum("bhsf,bhsd->bhfd", phi_k, v)
        z  = torch.einsum("bhsf->bhf", phi_k)
        num = torch.einsum("bhqf,bhfd->bhqd", phi_q, kv)
        den = torch.einsum("bhqf,bhf->bhq", phi_q, z)[..., None] + 1e-6
        o = num / den
        return (lambda x, *d: x.permute(*d))(o, 0, 2, 1, 3).reshape(B, S, D) @ wo

    a = _A_ref(A_x, A_wqkv, A_wo)
    b = _B_ref(B_x, B_wqkv, B_w_phi, B_wo)
    return torch.concatenate([a, b], axis=-1)
```

```python
import re
TRANS=('v_exp_','v_log_','v_rcp_','v_rsq_','v_sqrt_','v_sin_','v_cos_')
def regs(tok):
    tok=tok.strip()
    tok=tok.lstrip('-')
    if tok.startswith('abs(') and tok.endswith(')'): tok=tok[4:-1]
    tok=tok.strip('|')
    m=re.fullmatch(r'([vsa])\[(\d+):(\d+)\]',tok)
    if m: return {(m.group(1),i) for i in range(int(m.group(2)),int(m.group(3))+1)}
    m=re.fullmatch(r'([vsa])(\d+)',tok)
    if m: return {(m.group(1),int(m.group(2)))}
    if tok=='vcc': return {('s','vcc')}
    if tok=='exec': return {('s','exec')}
    if tok=='m0': return {('s','m0')}
    return set()
class I:
    def __init__(s,text):
        s.text=text; t=text.split(';')[0].strip()
        s.label=t.endswith(':')
        s.op=t.split()[0] if t else ''
        rest=t[len(s.op):].strip()
        ops=[x.strip() for x in rest.split(',')] if rest else []
        if ops: ops[-1]=ops[-1].split()[0] if ops[-1] else ops[-1]
        s.ops=ops; op=s.op
        s.valu=op.startswith('v_') and not op.startswith('v_mfma')
        s.mfma=op.startswith('v_mfma')
        s.salu=op.startswith('s_')
        s.vmem=op.startswith(('buffer_','global_'))
        s.ds=op.startswith('ds_')
        s.trans=op.startswith(TRANS)
        s.w=set(); s.r=set(); s.c=set(); s.sdata=set()
        R=[regs(o) for o in ops]
        lds=' lds' in t
        if s.mfma:
            s.w=R[0]; s.r=R[1]|R[2]|R[3]; s.c=R[3]; s.ab=R[1]|R[2]
            s.passes=8 if '32x32' in op else 4
        elif s.valu:
            if op.startswith('v_cmp'): s.w=R[0]; s.r=set().union(*R[1:])
            elif op.startswith('v_permlane') and 'swap' in op: s.w=R[0]|R[1]; s.r=R[0]|R[1]
            elif op.startswith(('v_add_co','v_sub_co','v_addc_co')): s.w=R[0]|R[1]; s.r=set().union(*R[2:])
            else:
                s.w=R[0]; s.r=set().union(*R[1:]) if len(R)>1 else set()
                if op.startswith(('v_fmac','v_pk_fmac')) or 'UNUSED_PRESERVE' in t or op.startswith('v_writelane'): s.r|=R[0]
                if op.startswith('v_cndmask') and len(R)==3: s.r|={('s','vcc')}
        elif s.vmem:
            if 'store' in op or ('atomic' in op):
                s.r=set().union(*R)
                if op.startswith('buffer_'): s.sdata=R[0]
                else: s.sdata=R[1]
                if 'atomic' in op and ' sc0' in t: s.w=R[0]
            elif lds: s.r=set().union(*R)|{('s','m0')}
            elif op.startswith(('buffer_inv','buffer_wbl2')): pass
            else: s.w=R[0]; s.r=set().union(*R[1:])
        elif s.ds:
            if op.startswith(('ds_write','ds_add')): s.r=set().union(*R)
            else: s.w=R[0]; s.r=set().union(*R[1:])
        elif s.salu:
            if op.startswith(('s_cmp','s_cbranch','s_branch','s_waitcnt','s_barrier','s_nop','s_endpgm','s_setprio','s_sleep')): s.r=set().union(*R) if R else set()
            else:
                s.w=R[0] if R else set(); s.r=set().union(*R[1:]) if len(R)>1 else set()
                if 'saveexec' in op: s.w|={('s','exec')}
        s.states=1
        if op=='s_nop': s.states=int(ops[0],0)+1
        if s.label or not op or op.startswith('.'): s.states=0
def V(x): return {r for r in x if r[0] in 'va'}
def S(x): return {r for r in x if r[0]=='s'}
def need(p,c):
    n=0
    if p.mfma:
        d=12 if p.passes==8 else 8
        if c.mfma:
            if c.ab & p.w: n=max(n,d)
            if c.c & p.w:
                if not (c.c==p.w and c.passes==p.passes): n=max(n,d-2)
            elif c.w & p.w: n=max(n,d)
        elif (c.valu or c.vmem or c.ds) and ((c.r|c.w)&p.w): n=max(n,d)
        if c.valu and (c.w & p.c): n=max(n,7 if p.passes==8 else 3)
    if p.valu:
        if c.mfma and (V(p.w)&c.r): n=max(n,2)
        if c.mfma and ('s','exec') in p.w: n=max(n,4)
        if p.trans and (c.valu or c.mfma or c.vmem or c.ds) and (V(p.w)&c.r): n=max(n,1)
        if c.op.startswith('v_permlane') and (V(p.w)&c.r): n=max(n,2)
        if 'dpp' in c.text and (V(p.w)&c.r): n=max(n,2)
        if c.op.startswith(('v_readlane','v_readfirstlane')) and (V(p.w)&c.r): n=max(n,1)
        if c.valu and (S(p.w)&c.r): n=max(n,4 if c.op.startswith(('v_readlane','v_writelane')) else 2)
        if c.vmem and (S(p.w)&c.r): n=max(n,5)
        if c.salu and (S(p.w)&c.r): n=max(n,1)
        if 'sdwa' in p.op and c.valu and (V(p.w)&(c.r|c.w)): n=max(n,1)
    if p.vmem and p.sdata and len(p.sdata)>=3 and (c.w & p.sdata): n=max(n,2)
    if p.salu and ('s','m0') in p.w and ('s','m0') in c.r and not c.salu: n=max(n,1)
    return n
class Asm:
    def __init__(s): s.L=[]
    def __call__(s,text):
        for l in text.split('\n'):
            l=l.strip()
            if l and not l.startswith(';'): s.L.append(l)
    def finish(s):
        ins=[I(t) for t in s.L]
        labels={i.text[:-1]:k for k,i in enumerate(ins) if i.label}
        out=[]; npad=0
        def req(hist,c):
            n=0; dist=0
            for p in reversed(hist):
                if dist>=20: break
                k=need(p,c)
                if k>dist: n=max(n,k-dist)
                dist+=p.states
            return n
        for c in ins:
            if c.states:
                n=req(out,c)
                while n>0:
                    k=min(n,16); out.append(I(f's_nop {k-1}')); n-=k; npad+=1
            out.append(c)
        lab={i.text[:-1]:k for k,i in enumerate(out) if i.label}
        for k,c in enumerate(out):
            if c.op.startswith(('s_cbranch','s_branch')) and c.ops[0] in lab:
                t=lab[c.ops[0]]; hist=list(out[max(0,k-40):k+1]); d=0
                for x in out[t:t+40]:
                    if x.states:
                        n=req(hist,x)
                        if n>0: raise Exception(f'hazard across branch {c.text} -> {x.text} needs {n}')
                        d+=x.states
                    hist.append(x)
                    if d>=20 or x.op in('s_branch','s_endpgm'): break
        return '\n'.join(('' if i.label else '    ')+i.text for i in out)+'\n'
def vr(a,n=1): return f'v{a}' if n==1 else f'v[{a}:{a+n-1}]'
def sr(a,n=1): return f's{a}' if n==1 else f's[{a}:{a+n-1}]'
def desc(name,nv,ns=96):
    return f'''.p2align 6
.amdhsa_kernel {name}
  .amdhsa_next_free_vgpr {nv}
  .amdhsa_next_free_sgpr {ns}
  .amdhsa_accum_offset {(nv+3)//4*4}
  .amdhsa_group_segment_fixed_size 0
  .amdhsa_kernarg_size 80
  .amdhsa_user_sgpr_count 2
  .amdhsa_user_sgpr_kernarg_segment_ptr 1
  .amdhsa_system_sgpr_workgroup_id_x 1
.end_amdhsa_kernel
'''
def head(name): return f'.globl {name}\n.p2align 8\n.type {name},@function\n{name}:\n'
```

```python
from asmlib import *
import struct, math
def f2u(x): return struct.unpack('<I',struct.pack('<f',x))[0]
QO=0; KVO=0x500000; OO=0xF00000; PO=0x1400000; WSN=0x1600000
M16='v_mfma_f32_32x32x16_bf16'; M8='v_mfma_f32_32x32x8bf16_1k'
def srd(a,d,base,n,off=None):
    if off is None: a(f's_mov_b32 s{d}, s{base}\ns_mov_b32 s{d+1}, s{base+1}')
    else: a(f's_add_u32 s{d}, s{base}, {off}\ns_addc_u32 s{d+1}, s{base+1}, 0')
    a(f's_mov_b32 s{d+2}, {n}\ns_mov_b32 s{d+3}, 0x20000')
def k1(pf=True):
    a=Asm(); BUF=49152
    a('''s_cmp_ge_u32 s2, 0x100
    s_cbranch_scc1 K1_END
    s_load_dwordx4 s[4:7], s[0:1], 0
    s_load_dwordx4 s[8:11], s[0:1], 24
    s_load_dwordx2 s[12:13], s[0:1], 72
    s_and_b32 s3, s2, 7
    s_lshr_b32 s14, s2, 3
    s_lshr_b32 s28, s3, 2
    s_and_b32 s29, s3, 1
    s_lshl_b32 s29, s29, 2
    s_and_b32 s15, s14, 3
    s_add_u32 s29, s29, s15
    s_bfe_u32 s30, s3, 0x10001
    s_lshl_b32 s30, s30, 3
    s_lshr_b32 s15, s14, 2
    s_add_u32 s30, s30, s15
    s_cmp_eq_u32 s30, 15
    s_cbranch_scc1 K1_END
    s_mul_i32 s31, s30, 205
    s_lshr_b32 s31, s31, 10
    s_mul_i32 s15, s31, 5
    s_sub_u32 s32, s30, s15
    v_lshrrev_b32 v1, 6, v0
    v_and_b32 v0, 63, v0
    v_readfirstlane_b32 s33, v1
    s_waitcnt lgkmcnt(0)
    s_cmp_eq_u32 s28, 0
    s_cselect_b32 s4, s4, s8
    s_cselect_b32 s5, s5, s9
    s_cselect_b32 s6, s6, s10
    s_cselect_b32 s7, s7, s11''')
    srd(a,16,4,2048*1280); srd(a,20,6,640*3840); srd(a,24,12,WSN)
    a('s_cmp_lt_u32 s33, 4\ns_cbranch_scc1 K1_COMP')
    a(f'''s_sub_u32 s33, s33, 4
    s_lshl_b32 s34, s29, 8
    s_lshl_b32 s35, s33, 6
    s_add_u32 s34, s34, s35
    v_lshrrev_b32 v1, 3, v0
    v_add_u32 v1, s34, v1
    v_mul_u32_u24 v1, 0x500, v1
    v_lshrrev_b32 v2, 4, v0
    v_and_b32 v3, 7, v0
    v_xor_b32 v3, v3, v2
    v_lshl_add_u32 v4, v3, 4, v1
    v_xor_b32 v3, 4, v3
    v_lshl_add_u32 v5, v3, 4, v1
    s_lshl_b32 s35, s33, 4
    v_add_u32 v1, s35, v2
    v_mul_u32_u24 v1, 0xf00, v1
    v_and_b32 v3, 15, v0
    v_lshlrev_b32 v2, 2, v2
    v_xor_b32 v3, v3, v2
    v_lshl_add_u32 v6, v3, 4, v1
    s_lshl_b32 s35, s30, 8
    v_add_u32 v6, s35, v6
    s_lshl_b32 s36, s33, 13
    s_lshl_b32 s37, s33, 12
    s_add_u32 s37, s37, 0x8000
    s_mov_b32 s38, 0
    s_mov_b32 s39, 0
    s_mov_b32 s40, 0
    s_mov_b32 s41, 0
    K1_LD:
    s_add_u32 s42, s41, s36
    s_mov_b32 s43, s39''')
    for j in range(8):
        a(f's_mov_b32 m0, s42\nbuffer_load_dwordx4 v{4+(j&1)}, s[16:19], s43 offen lds')
        if j<7: a('s_add_u32 s42, s42, 0x400\ns_add_u32 s43, s43, 0x2800')
    a('s_add_u32 s42, s41, s37\ns_mov_b32 s43, s40')
    for j in range(4):
        a(f's_mov_b32 m0, s42\nbuffer_load_dwordx4 v6, s[20:23], s43 offen lds')
        if j<3: a('s_add_u32 s42, s42, 0x400\ns_add_u32 s43, s43, 0x3c00')
    a(f'''s_add_u32 s39, s39, 0x80
    s_add_u32 s40, s40, {64*3840}
    s_add_u32 s41, s41, {BUF}
    s_cmp_eq_u32 s41, {3*BUF}
    s_cselect_b32 s41, 0, s41
    s_add_u32 s38, s38, 1
    s_cmp_lt_u32 s38, 3
    s_cbranch_scc1 K1_LD
    s_cmp_gt_u32 s38, 3
    s_cbranch_scc1 K1_LD2
    s_waitcnt vmcnt(24)
    s_barrier
    K1_LD2:
    s_waitcnt vmcnt(12)
    s_barrier
    s_cmp_lt_u32 s38, 10
    s_cbranch_scc1 K1_LD
    s_waitcnt vmcnt(0)
    s_barrier
    s_endpgm
    K1_COMP:''')
    AX,AW,EP,FR,AC=8,12,16,32,80
    a(f'''v_and_b32 v1, 31, v0
    v_lshrrev_b32 v2, 5, v0
    s_lshl_b32 s34, s33, 13
    v_lshlrev_b32 v3, 7, v1
    v_add_u32 v3, s34, v3
    v_bfe_u32 v4, v1, 1, 3''')
    for s in range(4): a(f'v_or_b32 v5, {2*s}, v2\nv_xor_b32 v5, v5, v4\nv_lshl_add_u32 v{AX+s}, v5, 4, v3')
    a(f'''v_bfe_u32 v4, v0, 2, 2
    v_lshl_add_u32 v3, v2, 3, v4
    v_lshlrev_b32 v3, 8, v3
    v_bfe_u32 v5, v0, 4, 1
    v_lshl_add_u32 v3, v5, 5, v3
    v_and_b32 v5, 3, v0
    v_lshl_add_u32 v3, v5, 3, v3
    v_add_u32 v3, 0x8000, v3''')
    for f in range(4): a(f'v_xor_b32 v5, {f}, v4\nv_lshl_add_u32 v{AW+f}, v5, 6, v3')
    if pf:
        a(f'''s_lshl_b32 s34, s29, 8
        s_lshl_b32 s35, s33, 6
        s_add_u32 s34, s34, s35
        v_add_u32 v3, s34, v0
        v_mul_u32_u24 v3, 0x500, v3''')
        a(f'''s_lshl_b32 s35, s33, 5
        v_lshrrev_b32 v4, 1, v0
        v_add_u32 v4, s35, v4
        v_mul_u32_u24 v4, 0xf00, v4
        v_and_b32 v5, 1, v0
        v_lshl_add_u32 v4, v5, 7, v4
        s_lshl_b32 s35, s30, 8
        v_add_u32 v4, s35, v4''')
        for c in range(3,10):
            a(f'buffer_load_dword v{205+c}, v3, s[16:19], 0 offen offset:{c*128}')
            if c&1: a(f's_mov_b32 s35, {(c-1)*64*3840}\nbuffer_load_dword v{215+c//2}, v4, s[20:23], s35 offen')
    for r in range(128): a(f'v_mov_b32 v{AC+r}, 0')
    a(f'''s_lshl_b32 s34, s29, 3
    s_lshl_b32 s35, s33, 1
    s_add_u32 s34, s34, s35
    s_lshl_b32 s35, s28, 11
    s_add_u32 s34, s34, s35
    s_cmp_eq_u32 s31, 0
    s_mov_b32 s46, 0xa00
    s_mov_b32 s51, {BUF}
    s_cselect_b32 s46, 0x500, s46
    s_cselect_b32 s47, 0, {KVO}
    s_mul_i32 s44, s34, s46
    s_add_u32 s44, s44, s47
    s_add_u32 s45, s44, s46
    s_lshl_b32 s46, s46, 6
    s_mov_b32 s48, 0
    s_mov_b32 s49, 0
    s_cmp_eq_u32 s31, 2
    s_cbranch_scc1 K1_V''')
    def reads(st,s):
        L=[]; b=FR+24*st
        for tt in range(2): L.append(f'ds_read_b128 {vr(b+4*tt,4)}, v{AX+s} offset:{tt*4096}')
        for f in range(4):
            for t in range(2): L.append(f'ds_read_b64_tr_b16 {vr(b+8+4*f+2*t,2)}, v{AW+f} offset:{(16*s+4*t)*256}')
        return L
    def gemm(tag,sw):
        def mf(st):
            b=FR+24*st; L=[]
            for f in range(4):
                for tt in range(2):
                    x=vr(b+4*tt,4); w=vr(b+8+4*f,4); c=vr(AC+16*(2*f+tt),16)
                    L.append(f'{M16} {c}, {x}, {w}, {c}' if sw else f'{M16} {c}, {w}, {x}, {c}')
            return L
        def step(s,last):
            m=mf(s&1); a('s_waitcnt lgkmcnt(0)')
            if s<3:
                r=reads((s+1)&1,s+1)
                for i in range(8):
                    a(m[i])
                    for x in r[2*i:2*i+2]: a(x)
            elif last:
                for x in m: a(x)
            else:
                a(m[0]); a(f's_add_u32 s48, s48, 1\ns_cmp_eq_u32 s48, 3\ns_cselect_b32 s50, {-2*BUF&0xffffffff}, s51\ns_cselect_b32 s48, 0, s48')
                for i in range(8): a(f'v_add_u32 v{AX+i}, s50, v{AX+i}')
                a(m[1]); a('s_barrier'); r=reads(0,0)
                for i in range(2,8):
                    a(m[i])
                    for x in r[2*(i-2):2*(i-2)+2]: a(x)
        a('s_barrier')
        for x in reads(0,0): a(x)
        a(f'K1_{tag}L:')
        for s in range(4): step(s,False)
        a(f's_add_u32 s49, s49, 1\ns_cmp_lt_u32 s49, 9\ns_cbranch_scc1 K1_{tag}L')
        for s in range(4): step(s,True)
    a('s_lshl_b32 s34, s32, 5\nv_add_u32 v3, s34, v2\nv_lshlrev_b32 v6, 4, v1\nv_lshlrev_b32 v7, 3, v1\nv_add_u32 v7, 0x400, v7')
    for i in range(16):
        e=EP+i
        a(f'''v_add_u32 v4, {2*i}, v3
        v_mul_u32_u24 v5, 0xcd, v4
        v_lshrrev_b32 v5, 10, v5
        v_mul_lo_u32 v{e}, v5, s46
        v_mul_u32_u24 v5, 5, v5
        v_sub_u32 v4, v4, v5
        v_cmp_eq_u32 vcc, 4, v4
        v_lshrrev_b32 v5, 1, v4
        v_lshl_add_u32 v5, v5, 9, v6
        v_and_b32 v4, 1, v4
        v_lshl_add_u32 v5, v4, 3, v5
        v_cndmask_b32 v5, v5, v7, vcc
        v_add_u32 v{e}, v{e}, v5''')
    L2E=math.log2(math.e)
    a(f'''s_cmp_eq_u32 s31, 0
    s_cselect_b32 s34, {f2u(L2E/math.sqrt(20))}, 1.0
    s_cmp_eq_u32 s28, 0
    s_cselect_b32 s34, s34, {f2u(L2E)}
    v_mov_b32 v6, s34
    v_mov_b32 v7, s34''')
    gemm('Q',False)
    k=0
    for f in range(4):
        for tt in range(2):
            for q in range(4):
                c=AC+16*(2*f+tt)+4*q; t=FR+2*(k%16); k+=1
                a(f'''v_pk_mul_f32 {vr(c,2)}, {vr(c,2)}, v[6:7]
                v_pk_mul_f32 {vr(c+2,2)}, {vr(c+2,2)}, v[6:7]
                v_cvt_pk_bf16_f32 v{t}, v{c}, v{c+1}
                v_cvt_pk_bf16_f32 v{t+1}, v{c+2}, v{c+3}
                buffer_store_dwordx2 {vr(t,2)}, v{EP+4*f+q}, s[24:27], s{44+tt} offen''')
    a('s_endpgm\nK1_V:')
    a('s_lshl_b32 s34, s32, 7\nv_add_u32 v3, s34, v1\nv_mul_u32_u24 v6, 0x140, v2\nv_add_u32 v6, 0x500, v6')
    for f in range(4):
        e=EP+f
        a(f'''v_add_u32 v4, {32*f}, v3
        v_mul_u32_u24 v5, 0xccd, v4
        v_lshrrev_b32 v5, 16, v5
        v_mul_lo_u32 v{e}, v5, s46
        v_mul_u32_u24 v5, 20, v5
        v_sub_u32 v4, v4, v5
        v_and_b32 v5, 19, v4
        v_and_b32 v7, 4, v4
        v_lshl_or_b32 v5, v7, 1, v5
        v_bfe_u32 v7, v4, 3, 1
        v_lshl_or_b32 v5, v7, 2, v5
        v_lshl_add_u32 v5, v5, 4, v6
        v_add_u32 v{e}, v{e}, v5''')
    gemm('V',True)
    k=0
    for f in range(4):
        for tt in range(2):
            for hv in range(2):
                c=AC+16*(2*f+tt)+8*hv; t=FR+4*(k%8); k+=1
                for i in range(4): a(f'v_cvt_pk_bf16_f32 v{t+i}, v{c+2*i}, v{c+2*i+1}')
                a(f'buffer_store_dwordx4 {vr(t,4)}, v{EP+f}, s[24:27], s{44+tt} offen offset:{640*hv}')
    a('K1_END:\ns_endpgm')
    return a.finish(), 220
```

```python
import sys
from k1 import *; from k2 import k2; from k3 import k3
def build(path,**kw):
    hdr=''.join(l for l in open('concat_heads__mha_block__linear_kernel_hedgehog__prompt.s.ref') if l.startswith('; ') and '@launch' not in l)
    ks=[('qkv_kernel',k1(kw.get('pf',True)),256,147456),('att_kernel',k2(),256,78848),('prj_kernel',k3(),160,163840)]
    s=hdr+''.join(f'; @launch kernel={n} grid=({g},1,1) block=(512,1,1) lds={l}\n' for n,_,g,l in ks)
    s+='.amdgcn_target "amdgcn-amd-amdhsa--gfx950"\n.text\n'
    for n,(t,nv),_,_ in ks: s+=head(n)+t
    s+='.section .rodata,"a"\n'
    for n,(t,nv),_,_ in ks: s+=desc(n,nv)
    open(path,'w').write(s)
if __name__=='__main__':
    build(sys.argv[1] if len(sys.argv)>1 else 'concat_heads__mha_block__linear_kernel_hedgehog__prompt.s', **{k:eval(v) for k,v in (x.split('=') for x in sys.argv[2:])})
```

```python
from asmlib import *
import struct, math
def f2u(x): return struct.unpack('<I',struct.pack('<f',x))[0]
QO=0; KVO=0x500000; OO=0xF00000; PO=0x1400000; WSN=0x1700000
M16='v_mfma_f32_32x32x16_bf16'; M8='v_mfma_f32_32x32x8bf16_1k'
def srd(a,d,base,n,off=None):
    if off is None: a(f's_mov_b32 s{d}, s{base}\ns_mov_b32 s{d+1}, s{base+1}')
    else: a(f's_add_u32 s{d}, s{base}, {off}\ns_addc_u32 s{d+1}, s{base+1}, 0')
    a(f's_mov_b32 s{d+2}, {n}\ns_mov_b32 s{d+3}, 0x20000')
PROF=[False]
CPF=[True]
def P0(a,name,reg):
    if CPF[0]: a(f's_getpc_b64 s[84:85]\ns_mov_b32 s86, ALL_END-{name}-8\ns_mov_b32 s87, 0x20000\nv_lshlrev_b32 v1, 7, v0\nbuffer_load_dword v{reg}, v1, s[84:87], 0 offen')
    if PROF[0]: a('s_memtime s[70:71]\ns_memrealtime s[72:73]\ns_mov_b32 s80, s2')
def PM(a,i):
    if PROF[0]: a(f's_memtime s[{74+2*i}:{75+2*i}]')
def PE(a,k,srd_):
    if PROF[0]: a(f'''s_waitcnt vmcnt(0)
    s_memtime s[78:79]
    s_memrealtime s[82:83]
    s_waitcnt lgkmcnt(0)
    s_sub_u32 s74, s74, s70
    s_sub_u32 s76, s76, s70
    s_sub_u32 s78, s78, s70
    s_sub_u32 s82, s82, s72
    s_lshl_b32 s80, s80, 3
    s_add_u32 s80, s80, s33
    s_lshl_b32 s80, s80, 4
    s_add_u32 s80, s80, {0x1600000+k*0x10000}
    v_mov_b32 v12, s74
    v_mov_b32 v13, s76
    v_mov_b32 v14, s78
    v_mov_b32 v15, s82
    v_mov_b32 v10, s80
    s_mov_b64 exec, 1
    buffer_store_dwordx4 v[12:15], v10, s[{srd_}:{srd_+3}], 0 offen''')
def k1(pf=True):
    a=Asm(); BUF=49152
    P0(a,'qkv_kernel',208)
    a('''s_cmp_ge_u32 s2, 0x100
    s_cbranch_scc1 K1_END
    s_load_dwordx4 s[4:7], s[0:1], 0
    s_load_dwordx4 s[8:11], s[0:1], 24
    s_load_dwordx2 s[12:13], s[0:1], 72
    s_and_b32 s3, s2, 7
    s_lshr_b32 s14, s2, 3
    s_lshr_b32 s28, s3, 2
    s_and_b32 s29, s3, 1
    s_lshl_b32 s29, s29, 2
    s_and_b32 s15, s14, 3
    s_add_u32 s29, s29, s15
    s_bfe_u32 s30, s3, 0x10001
    s_lshl_b32 s30, s30, 3
    s_lshr_b32 s15, s14, 2
    s_add_u32 s30, s30, s15
    s_cmp_eq_u32 s30, 15
    s_cbranch_scc1 K1_END
    s_mul_i32 s31, s30, 205
    s_lshr_b32 s31, s31, 10
    s_mul_i32 s15, s31, 5
    s_sub_u32 s32, s30, s15
    v_lshrrev_b32 v1, 6, v0
    v_and_b32 v0, 63, v0
    v_readfirstlane_b32 s33, v1
    s_waitcnt lgkmcnt(0)
    s_cmp_eq_u32 s28, 0
    s_cselect_b32 s4, s4, s8
    s_cselect_b32 s5, s5, s9
    s_cselect_b32 s6, s6, s10
    s_cselect_b32 s7, s7, s11''')
    srd(a,16,4,2048*1280); srd(a,20,6,640*3840); srd(a,24,12,WSN)
    a('s_cmp_lt_u32 s33, 4\ns_cbranch_scc1 K1_COMP')
    a(f'''s_sub_u32 s33, s33, 4
    s_lshl_b32 s34, s29, 8
    s_lshl_b32 s35, s33, 6
    s_add_u32 s34, s34, s35
    v_lshrrev_b32 v1, 3, v0
    v_add_u32 v1, s34, v1
    v_mul_u32_u24 v1, 0x500, v1
    v_lshrrev_b32 v2, 4, v0
    v_and_b32 v3, 7, v0
    v_xor_b32 v3, v3, v2
    v_lshl_add_u32 v4, v3, 4, v1
    v_xor_b32 v3, 4, v3
    v_lshl_add_u32 v5, v3, 4, v1
    s_lshl_b32 s35, s33, 4
    v_add_u32 v1, s35, v2
    v_mul_u32_u24 v1, 0xf00, v1
    v_and_b32 v3, 15, v0
    v_lshlrev_b32 v2, 2, v2
    v_xor_b32 v3, v3, v2
    v_lshl_add_u32 v6, v3, 4, v1
    s_lshl_b32 s35, s30, 8
    v_add_u32 v6, s35, v6
    s_lshl_b32 s36, s33, 13
    s_lshl_b32 s37, s33, 12
    s_add_u32 s37, s37, 0x8000
    s_mov_b32 s38, 0
    s_mov_b32 s39, 0
    s_mov_b32 s40, 0
    s_mov_b32 s41, 0
    K1_LD:
    s_add_u32 s42, s41, s36
    s_mov_b32 s43, s39''')
    for j in range(8):
        a(f's_mov_b32 m0, s42\nbuffer_load_dwordx4 v{4+(j&1)}, s[16:19], s43 offen lds')
        if j<7: a('s_add_u32 s42, s42, 0x400\ns_add_u32 s43, s43, 0x2800')
    a('s_add_u32 s42, s41, s37\ns_mov_b32 s43, s40')
    for j in range(4):
        a(f's_mov_b32 m0, s42\nbuffer_load_dwordx4 v6, s[20:23], s43 offen lds')
        if j<3: a('s_add_u32 s42, s42, 0x400\ns_add_u32 s43, s43, 0x3c00')
    a(f'''s_add_u32 s39, s39, 0x80
    s_add_u32 s40, s40, {64*3840}
    s_add_u32 s41, s41, {BUF}
    s_cmp_eq_u32 s41, {3*BUF}
    s_cselect_b32 s41, 0, s41
    s_add_u32 s38, s38, 1
    s_cmp_lt_u32 s38, 3
    s_cbranch_scc1 K1_LD
    s_cmp_gt_u32 s38, 3
    s_cbranch_scc1 K1_LD2
    s_waitcnt vmcnt(24)
    s_barrier
    K1_LD2:
    s_waitcnt vmcnt(12)
    s_barrier
    s_cmp_lt_u32 s38, 10
    s_cbranch_scc1 K1_LD
    s_waitcnt vmcnt(0)
    s_barrier
    s_endpgm
    K1_COMP:''')
    AX,AW,EP,FR,AC=8,12,16,32,80
    a(f'''v_and_b32 v1, 31, v0
    v_lshrrev_b32 v2, 5, v0
    s_lshl_b32 s34, s33, 13
    v_lshlrev_b32 v3, 7, v1
    v_add_u32 v3, s34, v3
    v_bfe_u32 v4, v1, 1, 3''')
    for s in range(4): a(f'v_or_b32 v5, {2*s}, v2\nv_xor_b32 v5, v5, v4\nv_lshl_add_u32 v{AX+s}, v5, 4, v3')
    def awcalc(perm):
        a(f'''v_bfe_u32 v4, v0, 2, 2
        v_lshl_add_u32 v3, v2, 3, v4
        v_lshlrev_b32 v3, 8, v3
        v_bfe_u32 v5, v0, 4, 1
        v_lshl_add_u32 v3, v5, 5, v3
        v_add_u32 v3, 0x8000, v3''')
        if perm: a('v_and_b32 v5, 1, v0\nv_lshl_add_u32 v3, v5, 4, v3\nv_bfe_u32 v5, v0, 1, 1\nv_lshl_add_u32 v3, v5, 3, v3')
        else: a('v_and_b32 v5, 3, v0\nv_lshl_add_u32 v3, v5, 3, v3')
        for f in range(4): a(f'v_xor_b32 v5, {f}, v4\nv_lshl_add_u32 v{AW+f}, v5, 6, v3')
    for r in range(128): a(f'v_mov_b32 v{AC+r}, 0')
    a(f'''s_lshl_b32 s34, s29, 3
    s_lshl_b32 s35, s33, 1
    s_add_u32 s34, s34, s35
    s_lshl_b32 s35, s28, 10
    s_add_u32 s34, s34, s35
    s_cmp_eq_u32 s31, 0
    s_mov_b32 s46, 0x1400
    s_mov_b32 s51, {BUF}
    s_cselect_b32 s46, 0xa00, s46
    s_cselect_b32 s47, 0, {KVO}
    s_mul_i32 s44, s34, s46
    s_add_u32 s44, s44, s47
    s_add_u32 s45, s44, s46
    s_lshl_b32 s46, s46, 6
    s_mov_b32 s52, 0x32410
    s_mov_b32 s48, 0
    s_mov_b32 s49, 0
    s_cmp_eq_u32 s31, 2
    s_cbranch_scc1 K1_V''')
    def reads(st,s):
        L=[]; b=FR+24*st
        for tt in range(2): L.append(f'ds_read_b128 {vr(b+4*tt,4)}, v{AX+s} offset:{tt*4096}')
        for f in range(4):
            for t in range(2): L.append(f'ds_read_b64_tr_b16 {vr(b+8+4*f+2*t,2)}, v{AW+f} offset:{(16*s+4*t)*256}')
        return L
    def gemm(tag,sw):
        def mf(st):
            b=FR+24*st; L=[]
            for f in range(4):
                for tt in range(2):
                    x=vr(b+4*tt,4); w=vr(b+8+4*f,4); c=vr(AC+16*(2*f+tt),16)
                    L.append(f'{M16} {c}, {x}, {w}, {c}' if sw else f'{M16} {c}, {w}, {x}, {c}')
            return L
        def step(s,last):
            m=mf(s&1); a('s_waitcnt lgkmcnt(0)')
            if s<3:
                r=reads((s+1)&1,s+1)
                for i in range(8):
                    a(m[i])
                    for x in r[2*i:2*i+2]: a(x)
            elif last:
                for x in m: a(x)
            else:
                a(m[0]); a(f's_add_u32 s48, s48, 1\ns_cmp_eq_u32 s48, 3\ns_cselect_b32 s50, {-2*BUF&0xffffffff}, s51\ns_cselect_b32 s48, 0, s48')
                for i in range(8): a(f'v_add_u32 v{AX+i}, s50, v{AX+i}')
                a(m[1]); a('s_barrier'); r=reads(0,0)
                for i in range(2,8):
                    a(m[i])
                    for x in r[2*(i-2):2*(i-2)+2]: a(x)
        a('s_barrier'); PM(a,0)
        for x in reads(0,0): a(x)
        a(f'K1_{tag}L:')
        for s in range(4): step(s,False)
        a(f's_add_u32 s49, s49, 1\ns_cmp_lt_u32 s49, 9\ns_cbranch_scc1 K1_{tag}L')
        for s in range(4): step(s,True)
        PM(a,1)
    awcalc(True)
    a('s_lshl_b32 s34, s32, 4\nv_add_u32 v3, s34, v2\nv_lshlrev_b32 v6, 4, v1')
    for i in range(8):
        e=EP+i
        a(f'''v_add_u32 v4, {2*i}, v3
        v_mul_u32_u24 v5, 0xcd, v4
        v_lshrrev_b32 v5, 10, v5
        v_mul_lo_u32 v{e}, v5, s46
        v_mul_u32_u24 v5, 5, v5
        v_sub_u32 v4, v4, v5
        v_lshlrev_b32 v4, 2, v4
        v_lshrrev_b32 v4, v4, s52
        v_and_b32 v4, 7, v4
        v_lshl_add_u32 v4, v4, 9, v6
        v_add_u32 v{e}, v{e}, v4''')
    L2E=math.log2(math.e)
    a(f'''s_cmp_eq_u32 s31, 0
    s_cselect_b32 s34, {f2u(L2E/math.sqrt(20))}, 1.0
    s_cmp_eq_u32 s28, 0
    s_cselect_b32 s34, s34, {f2u(L2E)}
    v_mov_b32 v6, s34
    v_mov_b32 v7, s34''')
    gemm('Q',False)
    k=0
    for f in range(4):
        for tt in range(2):
            for b in range(2):
                c=AC+16*(2*f+tt)+8*b; t=FR+4*(k%8); k+=1
                for i in range(4): a(f'v_pk_mul_f32 {vr(c+2*i,2)}, {vr(c+2*i,2)}, v[6:7]')
                for i in range(4): a(f'v_cvt_pk_bf16_f32 v{t+i}, v{c+2*i}, v{c+2*i+1}')
                a(f'buffer_store_dwordx4 {vr(t,4)}, v{EP+2*f+b}, s[24:27], s{44+tt} offen')
    PE(a,0,24)
    a('s_endpgm\nK1_V:')
    awcalc(False)
    a('s_lshl_b32 s34, s32, 7\nv_add_u32 v3, s34, v1\nv_mul_u32_u24 v6, 0x140, v2\nv_add_u32 v6, 0xa00, v6')
    for f in range(4):
        e=EP+f
        a(f'''v_add_u32 v4, {32*f}, v3
        v_mul_u32_u24 v5, 0xccd, v4
        v_lshrrev_b32 v5, 16, v5
        v_lshrrev_b32 v7, 1, v5
        v_mul_lo_u32 v{e}, v7, s46
        v_and_b32 v7, 1, v5
        v_mul_u32_u24 v7, 0x500, v7
        v_add_u32 v{e}, v{e}, v7
        v_mul_u32_u24 v5, 20, v5
        v_sub_u32 v4, v4, v5
        v_and_b32 v5, 19, v4
        v_and_b32 v7, 4, v4
        v_lshl_or_b32 v5, v7, 1, v5
        v_bfe_u32 v7, v4, 3, 1
        v_lshl_or_b32 v5, v7, 2, v5
        v_lshl_add_u32 v5, v5, 4, v6
        v_add_u32 v{e}, v{e}, v5''')
    gemm('V',True)
    k=0
    for f in range(4):
        for tt in range(2):
            for hv in range(2):
                c=AC+16*(2*f+tt)+8*hv; t=FR+4*(k%8); k+=1
                for i in range(4): a(f'v_cvt_pk_bf16_f32 v{t+i}, v{c+2*i}, v{c+2*i+1}')
                a(f'buffer_store_dwordx4 {vr(t,4)}, v{EP+f}, s[24:27], s{44+tt} offen offset:{640*hv}')
    PE(a,0,24)
    a('K1_END:\ns_endpgm')
    return a.finish(), 209
```

```python
import sys
from k1 import *; from k2 import k2; from k3 import k3
def build(path,**kw):
    PROF[0]=kw.get('prof',False)
    CPF[0]=kw.get('cpf',True)
    hdr=''.join(l for l in open('concat_heads__mha_block__linear_kernel_hedgehog__prompt.s.ref') if l.startswith('; ') and '@launch' not in l)
    ks=[('qkv_kernel',k1(kw.get('pf',False)),256,147456),('att_kernel',k2(kw.get('x',0)),256,58624),('prj_kernel',k3(),160,163840)]
    order=kw.get('order',None)
    if order is not None and 3 in order: ks.append(('nop_kernel',('s_endpgm\n',8),1,0))
    s=hdr+''.join(f'; @launch kernel={n} grid=({g},1,1) block=(512,1,1) lds={l}\n' for n,_,g,l in ([ks[i] for i in order] if order else ks))
    s+='.amdgcn_target "amdgcn-amd-amdhsa--gfx950"\n.text\n'
    for n,(t,nv),_,_ in ks: s+=head(n)+t
    s+='ALL_END:\n.section .rodata,"a"\n'
    for n,(t,nv),_,_ in ks: s+=desc(n,nv)
    open(path,'w').write(s)
if __name__=='__main__':
    build(sys.argv[1] if len(sys.argv)>1 else 'concat_heads__mha_block__linear_kernel_hedgehog__prompt.s', **{k:eval(v) for k,v in (x.split('=') for x in sys.argv[2:])})
```

```python
from asmlib import *
import struct, math
def f2u(x): return struct.unpack('<I',struct.pack('<f',x))[0]
QO=0; KVO=0x500000; OO=0xF00000; PO=0x1400000; WSN=0x1700000
M16='v_mfma_f32_32x32x16_bf16'; M8='v_mfma_f32_32x32x8bf16_1k'
def srd(a,d,base,n,off=None):
    if off is None: a(f's_mov_b32 s{d}, s{base}\ns_mov_b32 s{d+1}, s{base+1}')
    else: a(f's_add_u32 s{d}, s{base}, {off}\ns_addc_u32 s{d+1}, s{base+1}, 0')
    a(f's_mov_b32 s{d+2}, {n}\ns_mov_b32 s{d+3}, 0x20000')
PROF=[False]
CPF=[True]
SM=['','','']
FUSE=[0]; ACQ=[2]; FO1=0x1580000; FO2=0x1590000; RP=[32,2]
def TID(a): a('v_mbcnt_lo_u32_b32 v0, -1, 0\nv_mbcnt_hi_u32_b32 v0, -1, v0\ns_lshl_b32 s3, s90, 6\nv_add_u32 v0, s3, v0')
def POLL(a,tag,n,ad,r):
    a(f's_mov_b32 s89, 0\n{tag}:\nbuffer_load_dword{"" if n==1 else "x4"} {vr(r,n) if n>1 else "v%d"%r}, v{ad}, s[96:99], 0 offen sc1\ns_add_u32 s89, s89, 1\ns_waitcnt vmcnt(0)')
    for i in range(n): a(f'v_xor_b32 v{r+i}, s91, v{r+i}')
    if n>1: a(f'v_or3_b32 v{r}, v{r}, v{r+1}, v{r+2}\nv_or_b32 v{r}, v{r}, v{r+3}')
    a(f'v_cmp_ne_u32 vcc, 0, v{r}\ns_cbranch_vccz {tag}X\ns_sleep {RP[1]}\ns_cmp_lt_u32 s89, 0x8000\ns_cbranch_scc1 {tag}\n{tag}X:')
def FLAG(a,sreg,r=10,R=1):
    a(f'v_mov_b32 v{r}, s91\nv_mov_b32 v{r+1}, s{sreg}')
    if R>1: a(f'v_mbcnt_lo_u32_b32 v{r+2}, -1, 0\nv_lshl_add_u32 v{r+1}, v{r+2}, 10, v{r+1}')
    a(f's_waitcnt vmcnt(0)\ns_mov_b64 exec, {hex((1<<R)-1) if R<32 else "s[60:61]"}\nbuffer_store_dword v{r}, v{r+1}, s[96:99], 0 offen sc1\ns_mov_b64 exec, -1')
def P0(a,name,reg):
    if FUSE[0] and name!='qkv_kernel':
        TID(a)
        if PROF[0]: a('s_mov_b32 s80, s2')
        return
    if CPF[0]: a(f's_getpc_b64 s[84:85]\ns_mov_b32 s86, ALL_END-{name}-8\ns_mov_b32 s87, 0x20000\nv_lshlrev_b32 v1, 7, v0\nbuffer_load_dword v{reg}, v1, s[84:87], 0 offen')
    if PROF[0]: a('s_memtime s[70:71]\ns_memrealtime s[72:73]\ns_mov_b32 s80, s2')
def PM(a,i):
    if PROF[0]: a(f's_memtime s[{74+2*i}:{75+2*i}]')
PX=[0]
def PE(a,k,srd_):
    if PROF[0] and PX[0] and k==0: a('s_waitcnt lgkmcnt(0)\ns_add_u32 s76, s72, s70')
    if PROF[0]: a(f'''s_waitcnt vmcnt(0)
    s_memtime s[78:79]
    s_memrealtime s[82:83]
    s_waitcnt lgkmcnt(0)
    s_sub_u32 s74, s74, s70
    s_sub_u32 s76, s76, s70
    s_sub_u32 s78, s78, s70
    s_sub_u32 s82, s82, s72
    s_lshl_b32 s80, s80, 3
    s_add_u32 s80, s80, s33
    s_lshl_b32 s80, s80, 4
    s_add_u32 s80, s80, {0x1600000+k*0x10000}
    v_mov_b32 v12, s74
    v_mov_b32 v13, s76
    v_mov_b32 v14, s78
    v_mov_b32 v15, s82
    v_mov_b32 v10, s80
    s_mov_b64 exec, 1
    buffer_store_dwordx4 v[12:15], v10, s[{srd_}:{srd_+3}], 0 offen
    s_mov_b64 exec, -1''')
def k1(pf=True):
    a=Asm(); BUF=49152
    P0(a,'qkv_kernel',208)
    a('''s_cmp_ge_u32 s2, 0x100
    s_cbranch_scc1 K3_END
    s_load_dwordx4 s[4:7], s[0:1], 0
    s_load_dwordx4 s[8:11], s[0:1], 24
    s_load_dwordx2 s[12:13], s[0:1], 72
    s_and_b32 s3, s2, 7
    s_lshr_b32 s14, s2, 3
    s_lshr_b32 s28, s3, 2
    s_and_b32 s29, s3, 1
    s_lshl_b32 s29, s29, 2
    s_and_b32 s15, s14, 3
    s_add_u32 s29, s29, s15
    s_bfe_u32 s30, s3, 0x10001
    s_lshl_b32 s30, s30, 3
    s_lshr_b32 s15, s14, 2
    s_add_u32 s30, s30, s15
''')
    if not FUSE[0]: a('s_cmp_eq_u32 s30, 15\ns_cbranch_scc1 K1_END')
    else: a('s_load_dwordx4 s[96:99], s[0:1], 64\ns_memrealtime s[88:89]')
    a('''    s_mul_i32 s31, s30, 205
    s_lshr_b32 s31, s31, 10
    s_mul_i32 s15, s31, 5
    s_sub_u32 s32, s30, s15
    v_lshrrev_b32 v1, 6, v0
    v_and_b32 v0, 63, v0
    v_readfirstlane_b32 s33, v1
    s_waitcnt lgkmcnt(0)
    s_cmp_eq_u32 s28, 0
    s_cselect_b32 s4, s4, s8
    s_cselect_b32 s5, s5, s9
    s_cselect_b32 s6, s6, s10
    s_cselect_b32 s7, s7, s11''')
    srd(a,16,4,2048*1280); srd(a,20,6,640*3840); srd(a,24,12,WSN)
    if FUSE[0]:
        a('s_mov_b32 s90, s33\ns_or_b32 s91, s88, 1'); srd(a,92,96,256); srd(a,96,98,WSN)
        a(f'''s_cmp_lg_u32 s33, 0
        s_cbranch_scc1 K1_NN
        {'buffer_inv sc1' if ACQ[0]==4 else 's_nop 0'}
        v_mov_b32 v210, s91
        v_mov_b32 v211, 0
        v_mov_b32 v209, 0xfc
        s_mov_b64 exec, 1
        buffer_atomic_cmpswap v[210:211], v209, s[92:95], 0 offen sc0 sc1
        s_mov_b64 exec, -1
        K1_NN:
        s_cmp_eq_u32 s30, 15
        s_cbranch_scc1 K1_PF''')
    a('s_cmp_lt_u32 s33, 4\ns_cbranch_scc1 K1_COMP')
    a(f'''s_sub_u32 s33, s33, 4
    s_lshl_b32 s34, s29, 8
    s_lshl_b32 s35, s33, 6
    s_add_u32 s34, s34, s35
    v_lshrrev_b32 v1, 3, v0
    v_add_u32 v1, s34, v1
    v_mul_u32_u24 v1, 0x500, v1
    v_lshrrev_b32 v2, 4, v0
    v_and_b32 v3, 7, v0
    v_xor_b32 v3, v3, v2
    v_lshl_add_u32 v4, v3, 4, v1
    v_xor_b32 v3, 4, v3
    v_lshl_add_u32 v5, v3, 4, v1
    s_lshl_b32 s35, s33, 4
    v_add_u32 v1, s35, v2
    v_mul_u32_u24 v1, 0xf00, v1
    v_and_b32 v3, 15, v0
    v_lshlrev_b32 v2, 2, v2
    v_xor_b32 v3, v3, v2
    v_lshl_add_u32 v6, v3, 4, v1
    s_lshl_b32 s35, s30, 8
    v_add_u32 v6, s35, v6
    s_lshl_b32 s36, s33, 13
    s_lshl_b32 s37, s33, 12
    s_add_u32 s37, s37, 0x8000
    s_mov_b32 s38, 0
    s_mov_b32 s39, 0
    s_mov_b32 s40, 0
    s_mov_b32 s41, 0
    K1_LD:
    s_add_u32 s42, s41, s36
    s_mov_b32 s43, s39''')
    for j in range(8):
        a(f's_mov_b32 m0, s42\nbuffer_load_dwordx4 v{4+(j&1)}, s[16:19], s43 offen lds')
        if j<7: a('s_add_u32 s42, s42, 0x400\ns_add_u32 s43, s43, 0x2800')
    a('s_add_u32 s42, s41, s37\ns_mov_b32 s43, s40')
    for j in range(4):
        a(f's_mov_b32 m0, s42\nbuffer_load_dwordx4 v6, s[20:23], s43 offen lds')
        if j<3: a('s_add_u32 s42, s42, 0x400\ns_add_u32 s43, s43, 0x3c00')
    a(f'''s_add_u32 s39, s39, 0x80
    s_add_u32 s40, s40, {64*3840}
    s_add_u32 s41, s41, {BUF}
    s_cmp_eq_u32 s41, {3*BUF}
    s_cselect_b32 s41, 0, s41
    s_add_u32 s38, s38, 1
    s_cmp_lt_u32 s38, 3
    s_cbranch_scc1 K1_LD
    s_cmp_gt_u32 s38, 3
    s_cbranch_scc1 K1_LD2
    s_waitcnt vmcnt(24)
    s_barrier
    K1_LD2:
    s_waitcnt vmcnt(12)
    s_barrier
    s_cmp_lt_u32 s38, 10
    s_cbranch_scc1 K1_LD
    s_waitcnt vmcnt(0)
    s_barrier
    K1_PF:
    s_cmp_lt_u32 s90, 4
    s_cbranch_scc1 K1_DONE
    s_cmp_lg_u32 s90, 4
    s_cbranch_scc1 K1_PF2
    {'buffer_inv sc1' if ACQ[0]==3 else 's_nop 0'}
    K1_PF2:
    s_load_dwordx2 s[4:5], s[0:1], 16
    s_load_dwordx4 s[8:11], s[0:1], 40
    s_lshr_b32 s14, s2, 3
    s_lshl_b32 s14, s14, 2
    s_add_u32 s14, s14, s90
    s_sub_u32 s14, s14, 4
    s_mul_i32 s14, s14, 6400
    s_lshr_b32 s15, s2, 6
    s_lshl_b32 s15, s15, 3
    s_add_u32 s15, s15, s3
    s_mul_i32 s15, s15, 800
    v_lshlrev_b32 v1, 7, v0
    s_waitcnt lgkmcnt(0)
    s_mov_b32 s16, s10
    s_mov_b32 s17, s11
    s_mov_b32 s18, 819200
    s_mov_b32 s19, 0x20000
    s_mov_b32 s6, 819200
    s_mov_b32 s7, 0x20000
    s_mov_b32 s10, 25600
    s_mov_b32 s11, 0x20000
    s_mov_b64 exec, 0xff
    buffer_load_dword v250, v1, s[8:11], s15 offen
    s_mov_b64 exec, -1
    buffer_load_dword v250, v1, s[4:7], s14 offen
    buffer_load_dword v251, v1, s[16:19], s14 offen
    s_branch K1_DONE
    K1_COMP:''')
    AX,AW,EP,FR,AC=8,12,16,32,80
    a(f'''v_and_b32 v1, 31, v0
    v_lshrrev_b32 v2, 5, v0
    s_lshl_b32 s34, s33, 13
    v_lshlrev_b32 v3, 7, v1
    v_add_u32 v3, s34, v3
    v_bfe_u32 v4, v1, 1, 3''')
    for s in range(4): a(f'v_or_b32 v5, {2*s}, v2\nv_xor_b32 v5, v5, v4\nv_lshl_add_u32 v{AX+s}, v5, 4, v3')
    def awcalc(perm):
        a(f'''v_bfe_u32 v4, v0, 2, 2
        v_lshl_add_u32 v3, v2, 3, v4
        v_lshlrev_b32 v3, 8, v3
        v_bfe_u32 v5, v0, 4, 1
        v_lshl_add_u32 v3, v5, 5, v3
        v_add_u32 v3, 0x8000, v3''')
        if perm: a('v_and_b32 v5, 1, v0\nv_lshl_add_u32 v3, v5, 4, v3\nv_bfe_u32 v5, v0, 1, 1\nv_lshl_add_u32 v3, v5, 3, v3')
        else: a('v_and_b32 v5, 3, v0\nv_lshl_add_u32 v3, v5, 3, v3')
        for f in range(4): a(f'v_xor_b32 v5, {f}, v4\nv_lshl_add_u32 v{AW+f}, v5, 6, v3')
    for r in range(128): a(f'v_mov_b32 v{AC+r}, 0')
    a(f'''s_lshl_b32 s34, s29, 3
    s_lshl_b32 s35, s33, 1
    s_add_u32 s34, s34, s35
    s_lshl_b32 s35, s28, 10
    s_add_u32 s34, s34, s35
    s_cmp_eq_u32 s31, 0
    s_mov_b32 s46, 0x1400
    s_mov_b32 s51, {BUF}
    s_cselect_b32 s46, 0xa00, s46
    s_cselect_b32 s47, 0, {KVO}
    s_mul_i32 s44, s34, s46
    s_add_u32 s44, s44, s47
    s_add_u32 s45, s44, s46
    s_lshl_b32 s46, s46, 6
    s_mov_b32 s52, 0x32410
    s_mov_b32 s48, 0
    s_mov_b32 s49, 0
    s_cmp_eq_u32 s31, 2
    s_cbranch_scc1 K1_V''')
    def reads(st,s):
        L=[]; b=FR+24*st
        for tt in range(2): L.append(f'ds_read_b128 {vr(b+4*tt,4)}, v{AX+s} offset:{tt*4096}')
        for f in range(4):
            for t in range(2): L.append(f'ds_read_b64_tr_b16 {vr(b+8+4*f+2*t,2)}, v{AW+f} offset:{(16*s+4*t)*256}')
        return L
    def gemm(tag,sw):
        def mf(st):
            b=FR+24*st; L=[]
            for f in range(4):
                for tt in range(2):
                    x=vr(b+4*tt,4); w=vr(b+8+4*f,4); c=vr(AC+16*(2*f+tt),16)
                    L.append(f'{M16} {c}, {x}, {w}, {c}' if sw else f'{M16} {c}, {w}, {x}, {c}')
            return L
        def step(s,last):
            m=mf(s&1); a('s_waitcnt lgkmcnt(0)')
            if s<3:
                r=reads((s+1)&1,s+1)
                for i in range(8):
                    a(m[i])
                    for x in r[2*i:2*i+2]: a(x)
            elif last:
                for x in m: a(x)
            else:
                a(m[0]); a(f's_add_u32 s48, s48, 1\ns_cmp_eq_u32 s48, 3\ns_cselect_b32 s50, {-2*BUF&0xffffffff}, s51\ns_cselect_b32 s48, 0, s48')
                for i in range(8): a(f'v_add_u32 v{AX+i}, s50, v{AX+i}')
                a(m[1]); a('s_barrier'); r=reads(0,0)
                for i in range(2,8):
                    a(m[i])
                    for x in r[2*(i-2):2*(i-2)+2]: a(x)
        a('s_barrier'); PM(a,0)
        for x in reads(0,0): a(x)
        a(f'K1_{tag}L:')
        for s in range(4): step(s,False)
        a(f's_add_u32 s49, s49, 1\ns_cmp_lt_u32 s49, 9\ns_cbranch_scc1 K1_{tag}L')
        for s in range(4): step(s,True)
        PM(a,1)
    awcalc(True)
    a('s_lshl_b32 s34, s32, 4\nv_add_u32 v3, s34, v2\nv_lshlrev_b32 v6, 4, v1')
    for i in range(8):
        e=EP+i
        a(f'''v_add_u32 v4, {2*i}, v3
        v_mul_u32_u24 v5, 0xcd, v4
        v_lshrrev_b32 v5, 10, v5
        v_mul_lo_u32 v{e}, v5, s46
        v_mul_u32_u24 v5, 5, v5
        v_sub_u32 v4, v4, v5
        v_lshlrev_b32 v4, 2, v4
        v_lshrrev_b32 v4, v4, s52
        v_and_b32 v4, 7, v4
        v_lshl_add_u32 v4, v4, 9, v6
        v_add_u32 v{e}, v{e}, v4''')
    L2E=math.log2(math.e)
    a(f'''s_cmp_eq_u32 s31, 0
    s_cselect_b32 s34, {f2u(L2E/math.sqrt(20))}, 1.0
    s_cmp_eq_u32 s28, 0
    s_cselect_b32 s34, s34, {f2u(L2E)}
    v_mov_b32 v6, s34
    v_mov_b32 v7, s34''')
    gemm('Q',False)
    k=0
    for f in range(4):
        for tt in range(2):
            for b in range(2):
                c=AC+16*(2*f+tt)+8*b; t=FR+4*(k%8); k+=1
                for i in range(4): a(f'v_pk_mul_f32 {vr(c+2*i,2)}, {vr(c+2*i,2)}, v[6:7]')
                for i in range(4): a(f'v_cvt_pk_bf16_f32 v{t+i}, v{c+2*i}, v{c+2*i+1}')
                a(f'buffer_store_dwordx4 {vr(t,4)}, v{EP+2*f+b}, s[24:27], s{44+tt} offen {SM[0]}')
    PE(a,0,24)
    a(('s_branch K1_DONE' if FUSE[0] else 's_endpgm')+'\nK1_V:')
    awcalc(False)
    a('s_lshl_b32 s34, s32, 7\nv_add_u32 v3, s34, v1\nv_mul_u32_u24 v6, 0x140, v2\nv_add_u32 v6, 0xa00, v6')
    for f in range(4):
        e=EP+f
        a(f'''v_add_u32 v4, {32*f}, v3
        v_mul_u32_u24 v5, 0xccd, v4
        v_lshrrev_b32 v5, 16, v5
        v_lshrrev_b32 v7, 1, v5
        v_mul_lo_u32 v{e}, v7, s46
        v_and_b32 v7, 1, v5
        v_mul_u32_u24 v7, 0x500, v7
        v_add_u32 v{e}, v{e}, v7
        v_mul_u32_u24 v5, 20, v5
        v_sub_u32 v4, v4, v5
        v_and_b32 v5, 19, v4
        v_and_b32 v7, 4, v4
        v_lshl_or_b32 v5, v7, 1, v5
        v_bfe_u32 v7, v4, 3, 1
        v_lshl_or_b32 v5, v7, 2, v5
        v_lshl_add_u32 v5, v5, 4, v6
        v_add_u32 v{e}, v{e}, v5''')
    gemm('V',True)
    k=0
    for f in range(4):
        for tt in range(2):
            for hv in range(2):
                c=AC+16*(2*f+tt)+8*hv; t=FR+4*(k%8); k+=1
                for i in range(4): a(f'v_cvt_pk_bf16_f32 v{t+i}, v{c+2*i}, v{c+2*i+1}')
                a(f'buffer_store_dwordx4 {vr(t,4)}, v{EP+f}, s[24:27], s{44+tt} offen offset:{640*hv} {SM[0]}')
    PE(a,0,24)
    if not FUSE[0]: a('K1_END:\ns_endpgm')
    else:
        a('K1_DONE:')
    return a.finish(), 209
def SEAM1(a):
    a(f'''s_waitcnt vmcnt(0)
    v_mov_b32 v14, 163836
    s_cmp_lg_u32 s90, 0
    s_cbranch_scc1 K1_D1
    v_readfirstlane_b32 s48, v210
    s_cmp_eq_u32 s48, 0
    s_cselect_b32 s91, s91, s48
    v_mov_b32 v16, s91
    ds_write_b32 v14, v16
    s_lshl_b32 s48, s2, 2
    s_add_u32 s48, s48, {FO1}
    v_lshl_add_u32 v17, v0, 10, s48
    s_and_b32 s48, s2, {RP[0]-1}
    s_lshl_b32 s48, s48, 10
    s_add_u32 s48, s48, {FO1}
    v_add_u32 v15, s48, v6
    s_waitcnt lgkmcnt(0)
    s_barrier
    s_mov_b64 exec, s[60:61]
    buffer_store_dword v16, v17, s[96:99], 0 offen sc1
    s_mov_b64 exec, -1''')
    if ACQ[0]==1: a('buffer_inv sc1')
    POLL(a,'K2_Q1',4,15,20)
    if ACQ[0]==2: a('buffer_inv sc1\ns_waitcnt vmcnt(0)')
    a('''s_branch K1_D2
    K1_D1:
    s_waitcnt lgkmcnt(0)
    s_barrier
    ds_read_b32 v16, v14
    s_waitcnt lgkmcnt(0)
    v_readfirstlane_b32 s91, v16
    K1_D2:''')
```

```python
import sys
from k1 import *; from k2 import k2; from k3 import k3
def build(path,**kw):
    PROF[0]=kw.get('prof',False)
    CPF[0]=kw.get('cpf',True)
    SM[:]=[['','sc1','nt','sc0 sc1','sc1 nt'][i] for i in kw.get('sm',[1,1,0])]
    FUSE[0]=kw.get('fuse',1); ACQ[0]=kw.get('acq',0)
    RP[:]=kw.get('rp',[32,2])
    PX[0]=kw.get('px',0)
    TCH[0]=kw.get('tch',0)
    DBG[0]=kw.get('dbg',0)
    ROT[:]=kw.get('rot',[5,1])
    hdr=''.join(l for l in open('concat_heads__mha_block__linear_kernel_hedgehog__prompt.s.ref') if l.startswith('; ') and '@launch' not in l)
    ks=[('qkv_kernel',k1(kw.get('pf',False)),256,147456),('att_kernel',k2(kw.get('x',0)),256,58624),('prj_kernel',k3(),160,163840)]
    if FUSE[0]: ks=[('qkv_kernel',(''.join(k[1][0] for k in ks),252),256,163840)]
    order=kw.get('order',None)
    if order is not None and 3 in order: ks.append(('nop_kernel',('s_endpgm\n',8),1,0))
    s=hdr+''.join(f'; @launch kernel={n} grid=({g},1,1) block=(512,1,1) lds={l}\n' for n,_,g,l in ([ks[i] for i in order] if order else ks))
    s+='.amdgcn_target "amdgcn-amd-amdhsa--gfx950"\n.text\n'
    for n,(t,nv),_,_ in ks: s+=head(n)+t
    s+='ALL_END:\n.section .rodata,"a"\n'
    for n,(t,nv),_,_ in ks: s+=desc(n,nv)
    if kw.get('plain','/v_' in path or 'prompt' in path): s=s.replace('@launch kernel=qkv_kernel ','@launch ').replace('qkv_kernel','concat_heads__mha_block__linear_kernel_hedgehog__prompt_kernel')
    open(path,'w').write(s)
if __name__=='__main__':
    build(sys.argv[1] if len(sys.argv)>1 else 'concat_heads__mha_block__linear_kernel_hedgehog__prompt.s', **{k:eval(v) for k,v in (x.split('=') for x in sys.argv[2:])})
```

```python
from asmlib import *
import struct, math
def f2u(x): return struct.unpack('<I',struct.pack('<f',x))[0]
QO=0; KVO=0x500000; OO=0xF00000; PO=0x1400000; WSN=0x1700000
M16='v_mfma_f32_32x32x16_bf16'; M8='v_mfma_f32_32x32x8bf16_1k'
def srd(a,d,base,n,off=None):
    if off is None: a(f's_mov_b32 s{d}, s{base}\ns_mov_b32 s{d+1}, s{base+1}')
    else: a(f's_add_u32 s{d}, s{base}, {off}\ns_addc_u32 s{d+1}, s{base+1}, 0')
    a(f's_mov_b32 s{d+2}, {n}\ns_mov_b32 s{d+3}, 0x20000')
PROF=[False]
CPF=[True]
SM=['','','']
FUSE=[0]; ACQ=[2]; FO1=0x1580000; FO2=0x1590000; RP=[32,2]
def TID(a): a('v_mbcnt_lo_u32_b32 v0, -1, 0\nv_mbcnt_hi_u32_b32 v0, -1, v0\ns_lshl_b32 s3, s90, 6\nv_add_u32 v0, s3, v0')
def POLL(a,tag,n,ad,r):
    a(f's_mov_b32 s89, 0\n{tag}:\nbuffer_load_dword{"" if n==1 else "x4"} {vr(r,n) if n>1 else "v%d"%r}, v{ad}, s[96:99], 0 offen sc1\ns_add_u32 s89, s89, 1\ns_waitcnt vmcnt(0)')
    for i in range(n): a(f'v_xor_b32 v{r+i}, s91, v{r+i}')
    if n>1: a(f'v_or3_b32 v{r}, v{r}, v{r+1}, v{r+2}\nv_or_b32 v{r}, v{r}, v{r+3}')
    a(f'v_cmp_ne_u32 vcc, 0, v{r}\ns_cbranch_vccz {tag}X\ns_sleep {RP[1]}\ns_cmp_lt_u32 s89, 0x8000\ns_cbranch_scc1 {tag}\n{tag}X:')
def FLAG(a,sreg,r=10,R=1):
    a(f'v_mov_b32 v{r}, s91\nv_mov_b32 v{r+1}, s{sreg}')
    if R>1: a(f'v_mbcnt_lo_u32_b32 v{r+2}, -1, 0\nv_lshl_add_u32 v{r+1}, v{r+2}, 10, v{r+1}')
    a(f's_waitcnt vmcnt(0)\ns_mov_b64 exec, {hex((1<<R)-1) if R<32 else "s[60:61]"}\nbuffer_store_dword v{r}, v{r+1}, s[96:99], 0 offen sc1\ns_mov_b64 exec, -1')
def P0(a,name,reg):
    if FUSE[0] and name!='qkv_kernel':
        TID(a)
        if PROF[0]: a('s_mov_b32 s80, s2')
        return
    if CPF[0]: a(f's_getpc_b64 s[84:85]\ns_mov_b32 s86, ALL_END-{name}-8\ns_mov_b32 s87, 0x20000\nv_lshlrev_b32 v1, 7, v0\nbuffer_load_dword v{reg}, v1, s[84:87], 0 offen')
    if PROF[0]: a('s_memtime s[70:71]\ns_memrealtime s[72:73]\ns_mov_b32 s80, s2')
def PM(a,i):
    if PROF[0]: a(f's_memtime s[{74+2*i}:{75+2*i}]')
PX=[0]; TCH=[0]
def PE(a,k,srd_):
    if PROF[0] and PX[0] and k==0: a('s_waitcnt lgkmcnt(0)\ns_add_u32 s76, s72, s70')
    if PROF[0]: a(f'''s_waitcnt vmcnt(0)
    s_memtime s[78:79]
    s_memrealtime s[82:83]
    s_waitcnt lgkmcnt(0)
    s_sub_u32 s74, s74, s70
    s_sub_u32 s76, s76, s70
    s_sub_u32 s78, s78, s70
    s_sub_u32 s82, s82, s72
    s_lshl_b32 s80, s80, 3
    s_add_u32 s80, s80, s33
    s_lshl_b32 s80, s80, 4
    s_add_u32 s80, s80, {0x1600000+k*0x10000}
    v_mov_b32 v12, s74
    v_mov_b32 v13, s76
    v_mov_b32 v14, s78
    v_mov_b32 v15, s82
    v_mov_b32 v10, s80
    s_mov_b64 exec, 1
    buffer_store_dwordx4 v[12:15], v10, s[{srd_}:{srd_+3}], 0 offen
    s_mov_b64 exec, -1''')
def sw_q(tag): return tag!='V'
def k1(pf=True):
    a=Asm(); BUF=49152
    P0(a,'qkv_kernel',208)
    a('''s_cmp_ge_u32 s2, 0x100
    s_cbranch_scc1 K3_END
    s_load_dwordx4 s[4:7], s[0:1], 0
    s_load_dwordx4 s[8:11], s[0:1], 24
    s_load_dwordx2 s[12:13], s[0:1], 72
    s_and_b32 s3, s2, 7
    s_lshr_b32 s14, s2, 3
    s_lshr_b32 s28, s3, 2
    s_and_b32 s29, s3, 1
    s_lshl_b32 s29, s29, 2
    s_and_b32 s15, s14, 3
    s_add_u32 s29, s29, s15
    s_bfe_u32 s30, s3, 0x10001
    s_lshl_b32 s30, s30, 3
    s_lshr_b32 s15, s14, 2
    s_add_u32 s30, s30, s15
''')
    if not FUSE[0]: a('s_cmp_eq_u32 s30, 15\ns_cbranch_scc1 K1_END')
    else: a('s_load_dwordx4 s[96:99], s[0:1], 64\ns_memrealtime s[88:89]')
    a('''    s_mul_i32 s31, s30, 205
    s_lshr_b32 s31, s31, 10
    s_mul_i32 s15, s31, 5
    s_sub_u32 s32, s30, s15
    v_lshrrev_b32 v1, 6, v0
    v_and_b32 v0, 63, v0
    v_readfirstlane_b32 s33, v1
    s_waitcnt lgkmcnt(0)
    s_cmp_eq_u32 s28, 0
    s_cselect_b32 s4, s4, s8
    s_cselect_b32 s5, s5, s9
    s_cselect_b32 s6, s6, s10
    s_cselect_b32 s7, s7, s11''')
    srd(a,16,4,2048*1280); srd(a,20,6,640*3840); srd(a,24,12,WSN)
    if FUSE[0]:
        a('s_mov_b32 s90, s33\ns_or_b32 s91, s88, 1'); srd(a,92,96,256); srd(a,96,98,WSN)
        a(f'''s_cmp_lg_u32 s33, 0
        s_cbranch_scc1 K1_NN
        {'buffer_inv sc1' if ACQ[0]==4 else 's_nop 0'}
        v_mov_b32 v210, s91
        v_mov_b32 v211, 0
        v_mov_b32 v209, 0xfc
        s_mov_b64 exec, 1
        buffer_atomic_cmpswap v[210:211], v209, s[92:95], 0 offen sc0 sc1
        s_mov_b64 exec, -1
        K1_NN:
        s_cmp_eq_u32 s30, 15
        s_cbranch_scc1 K1_PF''')
    a('s_cmp_lt_u32 s33, 4\ns_cbranch_scc1 K1_COMP')
    a(f'''s_sub_u32 s33, s33, 4
    s_lshl_b32 s34, s29, 8
    s_lshl_b32 s35, s33, 6
    s_add_u32 s34, s34, s35
    v_lshrrev_b32 v1, 3, v0
    v_add_u32 v1, s34, v1
    v_mul_u32_u24 v1, 0x500, v1
    v_lshrrev_b32 v2, 4, v0
    v_and_b32 v3, 7, v0
    v_xor_b32 v3, v3, v2
    v_lshl_add_u32 v4, v3, 4, v1
    v_xor_b32 v3, 4, v3
    v_lshl_add_u32 v5, v3, 4, v1
    s_lshl_b32 s35, s33, 4
    v_add_u32 v1, s35, v2
    v_mul_u32_u24 v1, 0xf00, v1
    v_and_b32 v3, 15, v0
    v_lshlrev_b32 v2, 2, v2
    v_xor_b32 v3, v3, v2
    v_lshl_add_u32 v6, v3, 4, v1
    s_lshl_b32 s35, s30, 8
    v_add_u32 v6, s35, v6
    s_lshl_b32 s36, s33, 13
    s_lshl_b32 s37, s33, 12
    s_add_u32 s37, s37, 0x8000
    s_mov_b32 s38, 0
    s_mov_b32 s39, 0
    s_mov_b32 s40, 0
    s_mov_b32 s41, 0
    K1_LD:
    s_add_u32 s42, s41, s36
    s_mov_b32 s43, s39''')
    for j in range(8):
        a(f's_mov_b32 m0, s42\nbuffer_load_dwordx4 v{4+(j&1)}, s[16:19], s43 offen lds')
        if j<7: a('s_add_u32 s42, s42, 0x400\ns_add_u32 s43, s43, 0x2800')
    a('s_add_u32 s42, s41, s37\ns_mov_b32 s43, s40')
    for j in range(4):
        a(f's_mov_b32 m0, s42\nbuffer_load_dwordx4 v6, s[20:23], s43 offen lds')
        if j<3: a('s_add_u32 s42, s42, 0x400\ns_add_u32 s43, s43, 0x3c00')
    a(f'''s_add_u32 s39, s39, 0x80
    s_add_u32 s40, s40, {64*3840}
    s_add_u32 s41, s41, {BUF}
    s_cmp_eq_u32 s41, {3*BUF}
    s_cselect_b32 s41, 0, s41
    s_add_u32 s38, s38, 1
    s_cmp_lt_u32 s38, 3
    s_cbranch_scc1 K1_LD
    s_cmp_gt_u32 s38, 3
    s_cbranch_scc1 K1_LD2
    s_waitcnt vmcnt(24)
    s_barrier
    K1_LD2:
    s_waitcnt vmcnt(12)
    s_barrier
    s_cmp_lt_u32 s38, 10
    s_cbranch_scc1 K1_LD
    s_waitcnt vmcnt(0)
    s_barrier
    K1_PF:
    s_cmp_lt_u32 s90, 4
    s_cbranch_scc1 K1_DONE
    s_cmp_lg_u32 s90, 4
    s_cbranch_scc1 K1_PF2
    {'buffer_inv sc1' if ACQ[0]==3 else 's_nop 0'}
    K1_PF2:
    s_load_dwordx2 s[4:5], s[0:1], 16
    s_load_dwordx4 s[8:11], s[0:1], 40
    s_lshr_b32 s14, s2, 3
    s_lshl_b32 s14, s14, 2
    s_add_u32 s14, s14, s90
    s_sub_u32 s14, s14, 4
    s_mul_i32 s14, s14, 6400
    s_lshr_b32 s15, s2, 6
    s_lshl_b32 s15, s15, 3
    s_add_u32 s15, s15, s3
    s_mul_i32 s15, s15, 800
    v_lshlrev_b32 v1, 7, v0
    s_waitcnt lgkmcnt(0)
    s_mov_b32 s16, s10
    s_mov_b32 s17, s11
    s_mov_b32 s18, 819200
    s_mov_b32 s19, 0x20000
    s_mov_b32 s6, 819200
    s_mov_b32 s7, 0x20000
    s_mov_b32 s10, 25600
    s_mov_b32 s11, 0x20000
    s_mov_b64 exec, 0xff
    buffer_load_dword v250, v1, s[8:11], s15 offen
    s_mov_b64 exec, -1
    buffer_load_dword v250, v1, s[4:7], s14 offen
    buffer_load_dword v251, v1, s[16:19], s14 offen
    s_branch K1_DONE
    K1_COMP:''')
    AX,AW,EP,FR,AC=8,12,16,32,80
    a(f'''v_and_b32 v1, 31, v0
    v_lshrrev_b32 v2, 5, v0
    s_lshl_b32 s34, s33, 13
    v_lshlrev_b32 v3, 7, v1
    v_add_u32 v3, s34, v3
    v_bfe_u32 v4, v1, 1, 3''')
    for s in range(4): a(f'v_or_b32 v5, {2*s}, v2\nv_xor_b32 v5, v5, v4\nv_lshl_add_u32 v{AX+s}, v5, 4, v3')
    def awcalc(perm):
        a(f'''v_bfe_u32 v4, v0, 2, 2
        v_lshl_add_u32 v3, v2, 3, v4
        v_lshlrev_b32 v3, 8, v3
        v_bfe_u32 v5, v0, 4, 1
        v_lshl_add_u32 v3, v5, 5, v3
        v_add_u32 v3, 0x8000, v3''')
        if perm: a('v_and_b32 v5, 1, v0\nv_lshl_add_u32 v3, v5, 4, v3\nv_bfe_u32 v5, v0, 1, 1\nv_lshl_add_u32 v3, v5, 3, v3')
        else: a('v_and_b32 v5, 3, v0\nv_lshl_add_u32 v3, v5, 3, v3')
        for f in range(4): a(f'v_xor_b32 v5, {f}, v4\nv_lshl_add_u32 v{AW+f}, v5, 6, v3')
    for r in range(128): a(f'v_mov_b32 v{AC+r}, 0')
    a(f'''s_lshl_b32 s34, s29, 3
    s_lshl_b32 s35, s33, 1
    s_add_u32 s34, s34, s35
    s_lshl_b32 s35, s28, 10
    s_add_u32 s34, s34, s35
    s_cmp_eq_u32 s31, 0
    s_mov_b32 s46, 0x1400
    s_mov_b32 s51, {BUF}
    s_cselect_b32 s46, 0xa00, s46
    s_cselect_b32 s47, 0, {KVO}
    s_mul_i32 s44, s34, s46
    s_add_u32 s44, s44, s47
    s_add_u32 s45, s44, s46
    s_lshl_b32 s46, s46, 6
    s_mov_b32 s52, 0x32410
    s_mov_b32 s48, 0
    s_mov_b32 s49, 0
    s_cmp_eq_u32 s31, 2
    s_cbranch_scc1 K1_V''')
    def reads(st,s):
        L=[]; b=FR+24*st
        for tt in range(2): L.append(f'ds_read_b128 {vr(b+4*tt,4)}, v{AX+s} offset:{tt*4096}')
        for f in range(4):
            for t in range(2): L.append(f'ds_read_b64_tr_b16 {vr(b+8+4*f+2*t,2)}, v{AW+f} offset:{(16*s+4*t)*256}')
        return L
    def gemm(tag,sw):
        def mf(st):
            b=FR+24*st; L=[]
            for f in range(4):
                for tt in range(2):
                    x=vr(b+4*tt,4); w=vr(b+8+4*f,4); c=vr(AC+16*(2*f+tt),16)
                    L.append(f'{M16} {c}, {x}, {w}, {c}' if sw else f'{M16} {c}, {w}, {x}, {c}')
            return L
        def step(s,last):
            m=mf(s&1); a('s_waitcnt lgkmcnt(0)')
            if s<3:
                r=reads((s+1)&1,s+1)
                for i in range(8):
                    a(m[i])
                    for x in r[2*i:2*i+2]: a(x)
            elif last:
                for x in m: a(x)
            else:
                a(m[0]); a(f's_add_u32 s48, s48, 1\ns_cmp_eq_u32 s48, 3\ns_cselect_b32 s50, {-2*BUF&0xffffffff}, s51\ns_cselect_b32 s48, 0, s48')
                for i in range(8): a(f'v_add_u32 v{AX+i}, s50, v{AX+i}')
                a(m[1]); a('s_barrier'); r=reads(0,0)
                for i in range(2,8):
                    a(m[i])
                    for x in r[2*(i-2):2*(i-2)+2]: a(x)
        if TCH[0]&1:
            for e in (EP, EP+(7 if sw_q(tag) else 3)): a(f'buffer_load_dword v209, v{e}, s[24:27], s44 offen sc1')
        if TCH[0]&2:
            a(f'''s_load_dwordx2 s[52:53], s[0:1], 56
            v_mul_u32_u24 v212, 81920, v0
            v_mov_b32 v213, 0x1550000
            s_mov_b32 s54, 5242880
            s_mov_b32 s55, 0x20000
            s_waitcnt lgkmcnt(0)
            buffer_load_dword v209, v212, s[52:55], 0 offen sc1
            buffer_load_dword v209, v213, s[24:27], 0 offen sc1''')
        a('s_barrier'); PM(a,0)
        for x in reads(0,0): a(x)
        a(f'K1_{tag}L:')
        for s in range(4): step(s,False)
        a(f's_add_u32 s49, s49, 1\ns_cmp_lt_u32 s49, 9\ns_cbranch_scc1 K1_{tag}L')
        for s in range(4): step(s,True)
        PM(a,1)
    awcalc(True)
    a('s_lshl_b32 s34, s32, 4\nv_add_u32 v3, s34, v2\nv_lshlrev_b32 v6, 4, v1')
    for i in range(8):
        e=EP+i
        a(f'''v_add_u32 v4, {2*i}, v3
        v_mul_u32_u24 v5, 0xcd, v4
        v_lshrrev_b32 v5, 10, v5
        v_mul_lo_u32 v{e}, v5, s46
        v_mul_u32_u24 v5, 5, v5
        v_sub_u32 v4, v4, v5
        v_lshlrev_b32 v4, 2, v4
        v_lshrrev_b32 v4, v4, s52
        v_and_b32 v4, 7, v4
        v_lshl_add_u32 v4, v4, 9, v6
        v_add_u32 v{e}, v{e}, v4''')
    L2E=math.log2(math.e)
    a(f'''s_cmp_eq_u32 s31, 0
    s_cselect_b32 s34, {f2u(L2E/math.sqrt(20))}, 1.0
    s_cmp_eq_u32 s28, 0
    s_cselect_b32 s34, s34, {f2u(L2E)}
    v_mov_b32 v6, s34
    v_mov_b32 v7, s34''')
    gemm('Q',False)
    k=0
    for f in range(4):
        for tt in range(2):
            for b in range(2):
                c=AC+16*(2*f+tt)+8*b; t=FR+4*(k%8); k+=1
                for i in range(4): a(f'v_pk_mul_f32 {vr(c+2*i,2)}, {vr(c+2*i,2)}, v[6:7]')
                for i in range(4): a(f'v_cvt_pk_bf16_f32 v{t+i}, v{c+2*i}, v{c+2*i+1}')
                a(f'buffer_store_dwordx4 {vr(t,4)}, v{EP+2*f+b}, s[24:27], s{44+tt} offen {SM[0]}')
    PE(a,0,24)
    a(('s_branch K1_DONE' if FUSE[0] else 's_endpgm')+'\nK1_V:')
    awcalc(False)
    a('s_lshl_b32 s34, s32, 7\nv_add_u32 v3, s34, v1\nv_mul_u32_u24 v6, 0x140, v2\nv_add_u32 v6, 0xa00, v6')
    for f in range(4):
        e=EP+f
        a(f'''v_add_u32 v4, {32*f}, v3
        v_mul_u32_u24 v5, 0xccd, v4
        v_lshrrev_b32 v5, 16, v5
        v_lshrrev_b32 v7, 1, v5
        v_mul_lo_u32 v{e}, v7, s46
        v_and_b32 v7, 1, v5
        v_mul_u32_u24 v7, 0x500, v7
        v_add_u32 v{e}, v{e}, v7
        v_mul_u32_u24 v5, 20, v5
        v_sub_u32 v4, v4, v5
        v_and_b32 v5, 19, v4
        v_and_b32 v7, 4, v4
        v_lshl_or_b32 v5, v7, 1, v5
        v_bfe_u32 v7, v4, 3, 1
        v_lshl_or_b32 v5, v7, 2, v5
        v_lshl_add_u32 v5, v5, 4, v6
        v_add_u32 v{e}, v{e}, v5''')
    gemm('V',True)
    k=0
    for f in range(4):
        for tt in range(2):
            for hv in range(2):
                c=AC+16*(2*f+tt)+8*hv; t=FR+4*(k%8); k+=1
                for i in range(4): a(f'v_cvt_pk_bf16_f32 v{t+i}, v{c+2*i}, v{c+2*i+1}')
                a(f'buffer_store_dwordx4 {vr(t,4)}, v{EP+f}, s[24:27], s{44+tt} offen offset:{640*hv} {SM[0]}')
    PE(a,0,24)
    if not FUSE[0]: a('K1_END:\ns_endpgm')
    else:
        a('K1_DONE:')
    return a.finish(), 209
def SEAM1(a):
    a(f'''s_waitcnt vmcnt(0)
    v_mov_b32 v14, 163836
    s_cmp_lg_u32 s90, 0
    s_cbranch_scc1 K1_D1
    v_readfirstlane_b32 s48, v210
    s_cmp_eq_u32 s48, 0
    s_cselect_b32 s91, s91, s48
    v_mov_b32 v16, s91
    ds_write_b32 v14, v16
    s_lshl_b32 s48, s2, 2
    s_add_u32 s48, s48, {FO1}
    v_lshl_add_u32 v17, v0, 10, s48
    s_and_b32 s48, s2, {RP[0]-1}
    s_lshl_b32 s48, s48, 10
    s_add_u32 s48, s48, {FO1}
    v_add_u32 v15, s48, v6
    s_waitcnt lgkmcnt(0)
    s_barrier
    s_mov_b64 exec, s[60:61]
    buffer_store_dword v16, v17, s[96:99], 0 offen sc1
    s_mov_b64 exec, -1''')
    if ACQ[0]==1: a('buffer_inv sc1')
    POLL(a,'K2_Q1',4,15,20)
    if ACQ[0]==2: a('buffer_inv sc1\ns_waitcnt vmcnt(0)')
    a('''s_branch K1_D2
    K1_D1:
    s_waitcnt lgkmcnt(0)
    s_barrier
    ds_read_b32 v16, v14
    s_waitcnt lgkmcnt(0)
    v_readfirstlane_b32 s91, v16
    K1_D2:''')
```

```python
from asmlib import *
import struct, math
def f2u(x): return struct.unpack('<I',struct.pack('<f',x))[0]
QO=0; KVO=0x500000; OO=0xF00000; PO=0x1400000; WSN=0x1700000
M16='v_mfma_f32_32x32x16_bf16'; M8='v_mfma_f32_32x32x8bf16_1k'
def srd(a,d,base,n,off=None):
    if off is None: a(f's_mov_b32 s{d}, s{base}\ns_mov_b32 s{d+1}, s{base+1}')
    else: a(f's_add_u32 s{d}, s{base}, {off}\ns_addc_u32 s{d+1}, s{base+1}, 0')
    a(f's_mov_b32 s{d+2}, {n}\ns_mov_b32 s{d+3}, 0x20000')
PROF=[False]
CPF=[True]
SM=['','','']
FUSE=[0]; ACQ=[2]; FO1=0x1580000; FO2=0x1590000; RP=[32,2]
def TID(a): a('v_mbcnt_lo_u32_b32 v0, -1, 0\nv_mbcnt_hi_u32_b32 v0, -1, v0\ns_lshl_b32 s3, s90, 6\nv_add_u32 v0, s3, v0')
def POLL(a,tag,n,ad,r):
    a(f's_mov_b32 s89, 0\n{tag}:\nbuffer_load_dword{"" if n==1 else "x4"} {vr(r,n) if n>1 else "v%d"%r}, v{ad}, s[96:99], 0 offen sc1\ns_add_u32 s89, s89, 1\ns_waitcnt vmcnt(0)')
    for i in range(n): a(f'v_xor_b32 v{r+i}, s91, v{r+i}')
    if n>1: a(f'v_or3_b32 v{r}, v{r}, v{r+1}, v{r+2}\nv_or_b32 v{r}, v{r}, v{r+3}')
    a(f'v_cmp_ne_u32 vcc, 0, v{r}\ns_cbranch_vccz {tag}X\ns_sleep {RP[1]}\ns_cmp_lt_u32 s89, 0x8000\ns_cbranch_scc1 {tag}\n{tag}X:')
def FLAG(a,sreg,r=10,R=1):
    a(f'v_mov_b32 v{r}, s91\nv_mov_b32 v{r+1}, s{sreg}')
    if R>1: a(f'v_mbcnt_lo_u32_b32 v{r+2}, -1, 0\nv_lshl_add_u32 v{r+1}, v{r+2}, 10, v{r+1}')
    a(f's_waitcnt vmcnt(0)\ns_mov_b64 exec, {hex((1<<R)-1) if R<32 else "s[60:61]"}\nbuffer_store_dword v{r}, v{r+1}, s[96:99], 0 offen sc1\ns_mov_b64 exec, -1')
def P0(a,name,reg):
    if FUSE[0] and name!='qkv_kernel':
        TID(a)
        if PROF[0]: a('s_mov_b32 s80, s2')
        return
    if CPF[0]: a(f's_getpc_b64 s[84:85]\ns_mov_b32 s86, ALL_END-{name}-8\ns_mov_b32 s87, 0x20000\nv_lshlrev_b32 v1, 7, v0\nbuffer_load_dword v{reg}, v1, s[84:87], 0 offen')
    DS(a,0); DI[0]=1
    if PROF[0]: a('s_memtime s[70:71]\ns_memrealtime s[72:73]\ns_mov_b32 s80, s2')
DBG=[0]; DI=[1]
def DS(a,i):
    if DBG[0]: a(f's_memrealtime s[{70+2*i}:{71+2*i}]')
def DE(a,base,idx):
    if not DBG[0]: return
    a('s_waitcnt vmcnt(0)'); DS(a,8); a('s_waitcnt lgkmcnt(0)')
    for i in idx: a(f's_sub_u32 s48, s{70+2*i}, s91\ns_add_u32 s48, s48, 1\nv_mov_b32 v12, s48\nv_mov_b32 v13, {4*(base+i)}\ns_mov_b64 exec, 1\nbuffer_atomic_umax v12, v13, s[92:95], 0 offen sc1\ns_mov_b64 exec, -1\ns_nop 4')
def PM(a,i):
    DS(a,DI[0]+i)
    if PROF[0]: a(f's_memtime s[{74+2*i}:{75+2*i}]')
PX=[0]; TCH=[0]
def PE(a,k,srd_):
    if PROF[0] and PX[0] and k==0: a('s_waitcnt lgkmcnt(0)\ns_add_u32 s76, s72, s70')
    if PROF[0]: a(f'''s_waitcnt vmcnt(0)
    s_memtime s[78:79]
    s_memrealtime s[82:83]
    s_waitcnt lgkmcnt(0)
    s_sub_u32 s74, s74, s70
    s_sub_u32 s76, s76, s70
    s_sub_u32 s78, s78, s70
    s_sub_u32 s82, s82, s72
    s_lshl_b32 s80, s80, 3
    s_add_u32 s80, s80, s33
    s_lshl_b32 s80, s80, 4
    s_add_u32 s80, s80, {0x1600000+k*0x10000}
    v_mov_b32 v12, s74
    v_mov_b32 v13, s76
    v_mov_b32 v14, s78
    v_mov_b32 v15, s82
    v_mov_b32 v10, s80
    s_mov_b64 exec, 1
    buffer_store_dwordx4 v[12:15], v10, s[{srd_}:{srd_+3}], 0 offen
    s_mov_b64 exec, -1''')
def sw_q(tag): return tag!='V'
def k1(pf=True):
    a=Asm(); BUF=49152
    P0(a,'qkv_kernel',208)
    a('''s_cmp_ge_u32 s2, 0x100
    s_cbranch_scc1 K3_END
    s_load_dwordx4 s[4:7], s[0:1], 0
    s_load_dwordx4 s[8:11], s[0:1], 24
    s_load_dwordx2 s[12:13], s[0:1], 72
    s_and_b32 s3, s2, 7
    s_lshr_b32 s14, s2, 3
    s_lshr_b32 s28, s3, 2
    s_and_b32 s29, s3, 1
    s_lshl_b32 s29, s29, 2
    s_and_b32 s15, s14, 3
    s_add_u32 s29, s29, s15
    s_bfe_u32 s30, s3, 0x10001
    s_lshl_b32 s30, s30, 3
    s_lshr_b32 s15, s14, 2
    s_add_u32 s30, s30, s15
''')
    if not FUSE[0]: a('s_cmp_eq_u32 s30, 15\ns_cbranch_scc1 K1_END')
    else: a('s_load_dwordx4 s[96:99], s[0:1], 64\ns_memrealtime s[88:89]')
    a('''    s_mul_i32 s31, s30, 205
    s_lshr_b32 s31, s31, 10
    s_mul_i32 s15, s31, 5
    s_sub_u32 s32, s30, s15
    v_lshrrev_b32 v1, 6, v0
    v_and_b32 v0, 63, v0
    v_readfirstlane_b32 s33, v1
    s_waitcnt lgkmcnt(0)
    s_cmp_eq_u32 s28, 0
    s_cselect_b32 s4, s4, s8
    s_cselect_b32 s5, s5, s9
    s_cselect_b32 s6, s6, s10
    s_cselect_b32 s7, s7, s11''')
    srd(a,16,4,2048*1280); srd(a,20,6,640*3840); srd(a,24,12,WSN)
    if FUSE[0]:
        a('s_mov_b32 s90, s33\ns_or_b32 s91, s88, 1'); srd(a,92,96,256); srd(a,96,98,WSN)
        a(f'''s_cmp_lg_u32 s33, 0
        s_cbranch_scc1 K1_NN
        {'buffer_inv sc1' if ACQ[0]==4 else 's_nop 0'}
        v_mov_b32 v210, s91
        v_mov_b32 v211, 0
        v_mov_b32 v209, 0xfc
        s_mov_b64 exec, 1
        buffer_atomic_cmpswap v[210:211], v209, s[92:95], 0 offen sc0 sc1
        s_mov_b64 exec, -1
        K1_NN:
        s_cmp_eq_u32 s30, 15
        s_cbranch_scc1 K1_PF''')
    a('s_cmp_lt_u32 s33, 4\ns_cbranch_scc1 K1_COMP')
    a(f'''s_sub_u32 s33, s33, 4
    s_lshl_b32 s34, s29, 8
    s_lshl_b32 s35, s33, 6
    s_add_u32 s34, s34, s35
    v_lshrrev_b32 v1, 3, v0
    v_add_u32 v1, s34, v1
    v_mul_u32_u24 v1, 0x500, v1
    v_lshrrev_b32 v2, 4, v0
    v_and_b32 v3, 7, v0
    v_xor_b32 v3, v3, v2
    v_lshl_add_u32 v4, v3, 4, v1
    v_xor_b32 v3, 4, v3
    v_lshl_add_u32 v5, v3, 4, v1
    s_lshl_b32 s35, s33, 4
    v_add_u32 v1, s35, v2
    v_mul_u32_u24 v1, 0xf00, v1
    v_and_b32 v3, 15, v0
    v_lshlrev_b32 v2, 2, v2
    v_xor_b32 v3, v3, v2
    v_lshl_add_u32 v6, v3, 4, v1
    s_lshl_b32 s35, s30, 8
    v_add_u32 v6, s35, v6
    s_lshl_b32 s36, s33, 13
    s_lshl_b32 s37, s33, 12
    s_add_u32 s37, s37, 0x8000
    s_mov_b32 s38, 0
    s_mov_b32 s39, 0
    s_mov_b32 s40, 0
    s_mov_b32 s41, 0
    K1_LD:
    s_add_u32 s42, s41, s36
    s_mov_b32 s43, s39''')
    for j in range(8):
        a(f's_mov_b32 m0, s42\nbuffer_load_dwordx4 v{4+(j&1)}, s[16:19], s43 offen lds')
        if j<7: a('s_add_u32 s42, s42, 0x400\ns_add_u32 s43, s43, 0x2800')
    a('s_add_u32 s42, s41, s37\ns_mov_b32 s43, s40')
    for j in range(4):
        a(f's_mov_b32 m0, s42\nbuffer_load_dwordx4 v6, s[20:23], s43 offen lds')
        if j<3: a('s_add_u32 s42, s42, 0x400\ns_add_u32 s43, s43, 0x3c00')
    a(f'''s_add_u32 s39, s39, 0x80
    s_add_u32 s40, s40, {64*3840}
    s_add_u32 s41, s41, {BUF}
    s_cmp_eq_u32 s41, {3*BUF}
    s_cselect_b32 s41, 0, s41
    s_add_u32 s38, s38, 1
    s_cmp_lt_u32 s38, 3
    s_cbranch_scc1 K1_LD
    s_cmp_gt_u32 s38, 3
    s_cbranch_scc1 K1_LD2
    s_waitcnt vmcnt(24)
    s_barrier
    K1_LD2:
    s_waitcnt vmcnt(12)
    s_barrier
    s_cmp_lt_u32 s38, 10
    s_cbranch_scc1 K1_LD
    s_waitcnt vmcnt(0)
    s_barrier
    K1_PF:
    s_cmp_lt_u32 s90, 4
    s_cbranch_scc1 K1_DONE
    s_cmp_lg_u32 s90, 4
    s_cbranch_scc1 K1_PF2
    {'buffer_inv sc1' if ACQ[0]==3 else 's_nop 0'}
    K1_PF2:
    s_load_dwordx2 s[4:5], s[0:1], 16
    s_load_dwordx4 s[8:11], s[0:1], 40
    s_lshr_b32 s14, s2, 3
    s_lshl_b32 s14, s14, 2
    s_add_u32 s14, s14, s90
    s_sub_u32 s14, s14, 4
    s_mul_i32 s14, s14, 6400
    s_lshr_b32 s15, s2, 6
    s_lshl_b32 s15, s15, 3
    s_add_u32 s15, s15, s3
    s_mul_i32 s15, s15, 800
    v_lshlrev_b32 v1, 7, v0
    s_waitcnt lgkmcnt(0)
    s_mov_b32 s16, s10
    s_mov_b32 s17, s11
    s_mov_b32 s18, 819200
    s_mov_b32 s19, 0x20000
    s_mov_b32 s6, 819200
    s_mov_b32 s7, 0x20000
    s_mov_b32 s10, 25600
    s_mov_b32 s11, 0x20000
    s_mov_b64 exec, 0xff
    buffer_load_dword v250, v1, s[8:11], s15 offen
    s_mov_b64 exec, -1
    buffer_load_dword v250, v1, s[4:7], s14 offen
    buffer_load_dword v251, v1, s[16:19], s14 offen
    s_branch K1_DONE
    K1_COMP:''')
    AX,AW,EP,FR,AC=8,12,16,32,80
    a(f'''v_and_b32 v1, 31, v0
    v_lshrrev_b32 v2, 5, v0
    s_lshl_b32 s34, s33, 13
    v_lshlrev_b32 v3, 7, v1
    v_add_u32 v3, s34, v3
    v_bfe_u32 v4, v1, 1, 3''')
    for s in range(4): a(f'v_or_b32 v5, {2*s}, v2\nv_xor_b32 v5, v5, v4\nv_lshl_add_u32 v{AX+s}, v5, 4, v3')
    def awcalc(perm):
        a(f'''v_bfe_u32 v4, v0, 2, 2
        v_lshl_add_u32 v3, v2, 3, v4
        v_lshlrev_b32 v3, 8, v3
        v_bfe_u32 v5, v0, 4, 1
        v_lshl_add_u32 v3, v5, 5, v3
        v_add_u32 v3, 0x8000, v3''')
        if perm: a('v_and_b32 v5, 1, v0\nv_lshl_add_u32 v3, v5, 4, v3\nv_bfe_u32 v5, v0, 1, 1\nv_lshl_add_u32 v3, v5, 3, v3')
        else: a('v_and_b32 v5, 3, v0\nv_lshl_add_u32 v3, v5, 3, v3')
        for f in range(4): a(f'v_xor_b32 v5, {f}, v4\nv_lshl_add_u32 v{AW+f}, v5, 6, v3')
    for r in range(128): a(f'v_mov_b32 v{AC+r}, 0')
    a(f'''s_lshl_b32 s34, s29, 3
    s_lshl_b32 s35, s33, 1
    s_add_u32 s34, s34, s35
    s_lshl_b32 s35, s28, 10
    s_add_u32 s34, s34, s35
    s_cmp_eq_u32 s31, 0
    s_mov_b32 s46, 0x1400
    s_mov_b32 s51, {BUF}
    s_cselect_b32 s46, 0xa00, s46
    s_cselect_b32 s47, 0, {KVO}
    s_mul_i32 s44, s34, s46
    s_add_u32 s44, s44, s47
    s_add_u32 s45, s44, s46
    s_lshl_b32 s46, s46, 6
    s_mov_b32 s52, 0x32410
    s_mov_b32 s48, 0
    s_mov_b32 s49, 0
    s_cmp_eq_u32 s31, 2
    s_cbranch_scc1 K1_V''')
    def reads(st,s):
        L=[]; b=FR+24*st
        for tt in range(2): L.append(f'ds_read_b128 {vr(b+4*tt,4)}, v{AX+s} offset:{tt*4096}')
        for f in range(4):
            for t in range(2): L.append(f'ds_read_b64_tr_b16 {vr(b+8+4*f+2*t,2)}, v{AW+f} offset:{(16*s+4*t)*256}')
        return L
    def gemm(tag,sw):
        def mf(st):
            b=FR+24*st; L=[]
            for f in range(4):
                for tt in range(2):
                    x=vr(b+4*tt,4); w=vr(b+8+4*f,4); c=vr(AC+16*(2*f+tt),16)
                    L.append(f'{M16} {c}, {x}, {w}, {c}' if sw else f'{M16} {c}, {w}, {x}, {c}')
            return L
        def step(s,last):
            m=mf(s&1); a('s_waitcnt lgkmcnt(0)')
            if s<3:
                r=reads((s+1)&1,s+1)
                for i in range(8):
                    a(m[i])
                    for x in r[2*i:2*i+2]: a(x)
            elif last:
                for x in m: a(x)
            else:
                a(m[0]); a(f's_add_u32 s48, s48, 1\ns_cmp_eq_u32 s48, 3\ns_cselect_b32 s50, {-2*BUF&0xffffffff}, s51\ns_cselect_b32 s48, 0, s48')
                for i in range(8): a(f'v_add_u32 v{AX+i}, s50, v{AX+i}')
                a(m[1]); a('s_barrier'); r=reads(0,0)
                for i in range(2,8):
                    a(m[i])
                    for x in r[2*(i-2):2*(i-2)+2]: a(x)
        if TCH[0]&1:
            for e in (EP, EP+(7 if sw_q(tag) else 3)): a(f'buffer_load_dword v209, v{e}, s[24:27], s44 offen sc1')
        if TCH[0]&2:
            a(f'''s_load_dwordx2 s[52:53], s[0:1], 56
            v_mul_u32_u24 v212, 81920, v0
            v_mov_b32 v213, 0x1550000
            s_mov_b32 s54, 5242880
            s_mov_b32 s55, 0x20000
            s_waitcnt lgkmcnt(0)
            buffer_load_dword v209, v212, s[52:55], 0 offen sc1
            buffer_load_dword v209, v213, s[24:27], 0 offen sc1''')
        a('s_barrier'); PM(a,0)
        for x in reads(0,0): a(x)
        a(f'K1_{tag}L:')
        for s in range(4): step(s,False)
        a(f's_add_u32 s49, s49, 1\ns_cmp_lt_u32 s49, 9\ns_cbranch_scc1 K1_{tag}L')
        for s in range(4): step(s,True)
        PM(a,1)
    awcalc(True)
    a('s_lshl_b32 s34, s32, 4\nv_add_u32 v3, s34, v2\nv_lshlrev_b32 v6, 4, v1')
    for i in range(8):
        e=EP+i
        a(f'''v_add_u32 v4, {2*i}, v3
        v_mul_u32_u24 v5, 0xcd, v4
        v_lshrrev_b32 v5, 10, v5
        v_mul_lo_u32 v{e}, v5, s46
        v_mul_u32_u24 v5, 5, v5
        v_sub_u32 v4, v4, v5
        v_lshlrev_b32 v4, 2, v4
        v_lshrrev_b32 v4, v4, s52
        v_and_b32 v4, 7, v4
        v_lshl_add_u32 v4, v4, 9, v6
        v_add_u32 v{e}, v{e}, v4''')
    L2E=math.log2(math.e)
    a(f'''s_cmp_eq_u32 s31, 0
    s_cselect_b32 s34, {f2u(L2E/math.sqrt(20))}, 1.0
    s_cmp_eq_u32 s28, 0
    s_cselect_b32 s34, s34, {f2u(L2E)}
    v_mov_b32 v6, s34
    v_mov_b32 v7, s34''')
    gemm('Q',False)
    k=0
    for f in range(4):
        for tt in range(2):
            for b in range(2):
                c=AC+16*(2*f+tt)+8*b; t=FR+4*(k%8); k+=1
                for i in range(4): a(f'v_pk_mul_f32 {vr(c+2*i,2)}, {vr(c+2*i,2)}, v[6:7]')
                for i in range(4): a(f'v_cvt_pk_bf16_f32 v{t+i}, v{c+2*i}, v{c+2*i+1}')
                a(f'buffer_store_dwordx4 {vr(t,4)}, v{EP+2*f+b}, s[24:27], s{44+tt} offen {SM[0]}')
    PE(a,0,24)
    a(('s_branch K1_DONE' if FUSE[0] else 's_endpgm')+'\nK1_V:')
    awcalc(False)
    a('s_lshl_b32 s34, s32, 7\nv_add_u32 v3, s34, v1\nv_mul_u32_u24 v6, 0x140, v2\nv_add_u32 v6, 0xa00, v6')
    for f in range(4):
        e=EP+f
        a(f'''v_add_u32 v4, {32*f}, v3
        v_mul_u32_u24 v5, 0xccd, v4
        v_lshrrev_b32 v5, 16, v5
        v_lshrrev_b32 v7, 1, v5
        v_mul_lo_u32 v{e}, v7, s46
        v_and_b32 v7, 1, v5
        v_mul_u32_u24 v7, 0x500, v7
        v_add_u32 v{e}, v{e}, v7
        v_mul_u32_u24 v5, 20, v5
        v_sub_u32 v4, v4, v5
        v_and_b32 v5, 19, v4
        v_and_b32 v7, 4, v4
        v_lshl_or_b32 v5, v7, 1, v5
        v_bfe_u32 v7, v4, 3, 1
        v_lshl_or_b32 v5, v7, 2, v5
        v_lshl_add_u32 v5, v5, 4, v6
        v_add_u32 v{e}, v{e}, v5''')
    gemm('V',True)
    k=0
    for f in range(4):
        for tt in range(2):
            for hv in range(2):
                c=AC+16*(2*f+tt)+8*hv; t=FR+4*(k%8); k+=1
                for i in range(4): a(f'v_cvt_pk_bf16_f32 v{t+i}, v{c+2*i}, v{c+2*i+1}')
                a(f'buffer_store_dwordx4 {vr(t,4)}, v{EP+f}, s[24:27], s{44+tt} offen offset:{640*hv} {SM[0]}')
    PE(a,0,24)
    if not FUSE[0]: a('K1_END:\ns_endpgm')
    else:
        a('K1_DONE:')
    return a.finish(), 209
def SEAM1(a):
    a(f'''s_waitcnt vmcnt(0)
    v_mov_b32 v14, 163836
    s_cmp_lg_u32 s90, 0
    s_cbranch_scc1 K1_D1
    v_readfirstlane_b32 s48, v210
    s_cmp_eq_u32 s48, 0
    s_cselect_b32 s91, s91, s48
    v_mov_b32 v16, s91
    ds_write_b32 v14, v16
    s_lshl_b32 s48, s2, 2
    s_add_u32 s48, s48, {FO1}
    v_lshl_add_u32 v17, v0, 10, s48
    s_and_b32 s48, s2, {RP[0]-1}
    s_lshl_b32 s48, s48, 10
    s_add_u32 s48, s48, {FO1}
    v_add_u32 v15, s48, v6
    s_waitcnt lgkmcnt(0)
    s_barrier
    s_mov_b64 exec, s[60:61]
    buffer_store_dword v16, v17, s[96:99], 0 offen sc1
    s_mov_b64 exec, -1''')
    if ACQ[0]==1: a('buffer_inv sc1')
    POLL(a,'K2_Q1',4,15,20)
    if ACQ[0]==2: a('buffer_inv sc1\ns_waitcnt vmcnt(0)')
    a('''s_branch K1_D2
    K1_D1:
    s_waitcnt lgkmcnt(0)
    s_barrier
    ds_read_b32 v16, v14
    s_waitcnt lgkmcnt(0)
    v_readfirstlane_b32 s91, v16
    K1_D2:''')
```

```python
from asmlib import *
import struct, math
def f2u(x): return struct.unpack('<I',struct.pack('<f',x))[0]
QO=0; KVO=0x500000; OO=0xF00000; PO=0x1400000; WSN=0x1700000
M16='v_mfma_f32_32x32x16_bf16'; M8='v_mfma_f32_32x32x8bf16_1k'
def srd(a,d,base,n,off=None):
    if off is None: a(f's_mov_b32 s{d}, s{base}\ns_mov_b32 s{d+1}, s{base+1}')
    else: a(f's_add_u32 s{d}, s{base}, {off}\ns_addc_u32 s{d+1}, s{base+1}, 0')
    a(f's_mov_b32 s{d+2}, {n}\ns_mov_b32 s{d+3}, 0x20000')
PROF=[False]
CPF=[True]
SM=['','','']
FUSE=[0]; ACQ=[2]; FO1=0x1580000; FO2=0x1590000; RP=[32,2]
def TID(a): a('v_mbcnt_lo_u32_b32 v0, -1, 0\nv_mbcnt_hi_u32_b32 v0, -1, v0\ns_lshl_b32 s3, s90, 6\nv_add_u32 v0, s3, v0')
def POLL(a,tag,n,ad,r):
    a(f's_mov_b32 s89, 0\n{tag}:\nbuffer_load_dword{"" if n==1 else "x4"} {vr(r,n) if n>1 else "v%d"%r}, v{ad}, s[96:99], 0 offen sc1\ns_add_u32 s89, s89, 1\ns_waitcnt vmcnt(0)')
    for i in range(n): a(f'v_xor_b32 v{r+i}, s91, v{r+i}')
    if n>1: a(f'v_or3_b32 v{r}, v{r}, v{r+1}, v{r+2}\nv_or_b32 v{r}, v{r}, v{r+3}')
    a(f'v_cmp_ne_u32 vcc, 0, v{r}\ns_cbranch_vccz {tag}X\ns_sleep {RP[1]}\ns_cmp_lt_u32 s89, 0x8000\ns_cbranch_scc1 {tag}\n{tag}X:')
def FLAG(a,sreg,r=10,R=1):
    a(f'v_mov_b32 v{r}, s91\nv_mov_b32 v{r+1}, s{sreg}')
    if R>1: a(f'v_mbcnt_lo_u32_b32 v{r+2}, -1, 0\nv_lshl_add_u32 v{r+1}, v{r+2}, 10, v{r+1}')
    a(f's_waitcnt vmcnt(0)\ns_mov_b64 exec, {hex((1<<R)-1) if R<32 else "s[60:61]"}\nbuffer_store_dword v{r}, v{r+1}, s[96:99], 0 offen sc1\ns_mov_b64 exec, -1')
def P0(a,name,reg):
    if FUSE[0] and name!='qkv_kernel':
        TID(a)
        if PROF[0]: a('s_mov_b32 s80, s2')
        return
    if CPF[0]: a(f's_getpc_b64 s[84:85]\ns_mov_b32 s86, ALL_END-{name}-8\ns_mov_b32 s87, 0x20000\nv_lshlrev_b32 v1, 7, v0\nbuffer_load_dword v{reg}, v1, s[84:87], 0 offen')
    DS(a,0); DI[0]=1
    if PROF[0]: a('s_memtime s[70:71]\ns_memrealtime s[72:73]\ns_mov_b32 s80, s2')
DBG=[0]; DI=[1]
def DS(a,i):
    if DBG[0]: a(f's_memrealtime s[{70+2*i}:{71+2*i}]')
def DE(a,base,idx):
    if not DBG[0]: return
    a('s_waitcnt vmcnt(0)'); DS(a,8); a('s_waitcnt lgkmcnt(0)')
    for i in idx: a(f's_sub_u32 s48, s{70+2*i}, s91\ns_add_u32 s48, s48, 1\nv_mov_b32 v12, s48\nv_mov_b32 v13, {4*(base+i)}\ns_mov_b64 exec, 1\nbuffer_atomic_umax v12, v13, s[92:95], 0 offen sc1\ns_mov_b64 exec, -1\ns_nop 4')
def PM(a,i):
    DS(a,DI[0]+i)
    if PROF[0]: a(f's_memtime s[{74+2*i}:{75+2*i}]')
ROT=[5,1]; PX=[0]; TCH=[0]
def PE(a,k,srd_):
    if PROF[0] and PX[0] and k==0: a('s_waitcnt lgkmcnt(0)\ns_add_u32 s76, s72, s70')
    if PROF[0]: a(f'''s_waitcnt vmcnt(0)
    s_memtime s[78:79]
    s_memrealtime s[82:83]
    s_waitcnt lgkmcnt(0)
    s_sub_u32 s74, s74, s70
    s_sub_u32 s76, s76, s70
    s_sub_u32 s78, s78, s70
    s_sub_u32 s82, s82, s72
    s_lshl_b32 s80, s80, 3
    s_add_u32 s80, s80, s33
    s_lshl_b32 s80, s80, 4
    s_add_u32 s80, s80, {0x1600000+k*0x10000}
    v_mov_b32 v12, s74
    v_mov_b32 v13, s76
    v_mov_b32 v14, s78
    v_mov_b32 v15, s82
    v_mov_b32 v10, s80
    s_mov_b64 exec, 1
    buffer_store_dwordx4 v[12:15], v10, s[{srd_}:{srd_+3}], 0 offen
    s_mov_b64 exec, -1''')
def sw_q(tag): return tag!='V'
def k1(pf=True):
    a=Asm(); BUF=49152
    P0(a,'qkv_kernel',208)
    a('''s_cmp_ge_u32 s2, 0x100
    s_cbranch_scc1 K3_END
    s_load_dwordx4 s[4:7], s[0:1], 0
    s_load_dwordx4 s[8:11], s[0:1], 24
    s_load_dwordx2 s[12:13], s[0:1], 72
    s_and_b32 s3, s2, 7
    s_lshr_b32 s14, s2, 3
    s_lshr_b32 s28, s3, 2
    s_and_b32 s29, s3, 1
    s_lshl_b32 s29, s29, 2
    s_and_b32 s15, s14, 3
    s_add_u32 s29, s29, s15
    s_bfe_u32 s30, s3, 0x10001
    s_lshl_b32 s30, s30, 3
    s_lshr_b32 s15, s14, 2
    s_add_u32 s30, s30, s15
''')
    if not FUSE[0]: a('s_cmp_eq_u32 s30, 15\ns_cbranch_scc1 K1_END')
    else: a('s_load_dwordx4 s[96:99], s[0:1], 64\ns_memrealtime s[88:89]')
    a('''    s_mul_i32 s31, s30, 205
    s_lshr_b32 s31, s31, 10
    s_mul_i32 s15, s31, 5
    s_sub_u32 s32, s30, s15
    v_lshrrev_b32 v1, 6, v0
    v_and_b32 v0, 63, v0
    v_readfirstlane_b32 s33, v1
    s_waitcnt lgkmcnt(0)
    s_cmp_eq_u32 s28, 0
    s_cselect_b32 s4, s4, s8
    s_cselect_b32 s5, s5, s9
    s_cselect_b32 s6, s6, s10
    s_cselect_b32 s7, s7, s11''')
    srd(a,16,4,2048*1280); srd(a,20,6,640*3840); srd(a,24,12,WSN)
    if FUSE[0]:
        a('s_mov_b32 s90, s33\ns_or_b32 s91, s88, 1'); srd(a,92,96,256); srd(a,96,98,WSN)
        a(f'''s_cmp_lg_u32 s33, 0
        s_cbranch_scc1 K1_NN
        {'buffer_inv sc1' if ACQ[0]==4 else 's_nop 0'}
        v_mov_b32 v210, s91
        v_mov_b32 v211, 0
        v_mov_b32 v209, 0xfc
        s_mov_b64 exec, 1
        buffer_atomic_cmpswap v[210:211], v209, s[92:95], 0 offen sc0 sc1
        s_mov_b64 exec, -1
        K1_NN:
        s_cmp_eq_u32 s30, 15
        s_cbranch_scc1 K1_PF''')
    a('s_cmp_lt_u32 s33, 4\ns_cbranch_scc1 K1_COMP')
    a(f'''s_sub_u32 s33, s33, 4
    s_lshl_b32 s34, s29, 8
    s_lshl_b32 s35, s33, 6
    s_add_u32 s34, s34, s35
    v_lshrrev_b32 v1, 3, v0
    v_add_u32 v1, s34, v1
    v_mul_u32_u24 v1, 0x500, v1
    v_lshrrev_b32 v2, 4, v0
    v_and_b32 v3, 7, v0
    v_xor_b32 v3, v3, v2
    v_lshl_add_u32 v4, v3, 4, v1
    v_xor_b32 v3, 4, v3
    v_lshl_add_u32 v5, v3, 4, v1
    s_lshl_b32 s35, s33, 4
    v_add_u32 v1, s35, v2
    v_mul_u32_u24 v1, 0xf00, v1
    v_and_b32 v3, 15, v0
    v_lshlrev_b32 v2, 2, v2
    v_xor_b32 v3, v3, v2
    v_lshl_add_u32 v6, v3, 4, v1
    s_lshl_b32 s35, s30, 8
    v_add_u32 v6, s35, v6
    s_lshl_b32 s36, s33, 13
    s_lshl_b32 s37, s33, 12
    s_add_u32 s37, s37, 0x8000
    s_mov_b32 s38, 0
    s_bfe_u32 s39, s2, 0x20003
    s_mul_i32 s39, s39, {ROT[0]}
    s_lshr_b32 s39, s39, 1
    s_lshr_b32 s40, s2, 5
    s_mul_i32 s40, s40, {ROT[1]}
    s_add_u32 s39, s39, s40
    s_mul_i32 s40, s39, 205
    s_lshr_b32 s40, s40, 11
    s_mul_i32 s40, s40, 10
    s_sub_u32 s39, s39, s40
    s_mul_i32 s40, s39, {64*3840}
    s_lshl_b32 s39, s39, 7
    s_mov_b32 s41, 0
    K1_LD:
    s_add_u32 s42, s41, s36
    s_mov_b32 s43, s39''')
    for j in range(8):
        a(f's_mov_b32 m0, s42\nbuffer_load_dwordx4 v{4+(j&1)}, s[16:19], s43 offen lds')
        if j<7: a('s_add_u32 s42, s42, 0x400\ns_add_u32 s43, s43, 0x2800')
    a('s_add_u32 s42, s41, s37\ns_mov_b32 s43, s40')
    for j in range(4):
        a(f's_mov_b32 m0, s42\nbuffer_load_dwordx4 v6, s[20:23], s43 offen lds')
        if j<3: a('s_add_u32 s42, s42, 0x400\ns_add_u32 s43, s43, 0x3c00')
    a(f'''s_add_u32 s39, s39, 0x80
    s_add_u32 s40, s40, {64*3840}
    s_cmp_eq_u32 s39, 0x500
    s_cselect_b32 s39, 0, s39
    s_cselect_b32 s40, 0, s40
    s_add_u32 s41, s41, {BUF}
    s_cmp_eq_u32 s41, {3*BUF}
    s_cselect_b32 s41, 0, s41
    s_add_u32 s38, s38, 1
    s_cmp_lt_u32 s38, 3
    s_cbranch_scc1 K1_LD
    s_cmp_gt_u32 s38, 3
    s_cbranch_scc1 K1_LD2
    s_waitcnt vmcnt(24)
    s_barrier
    K1_LD2:
    s_waitcnt vmcnt(12)
    s_barrier
    s_cmp_lt_u32 s38, 10
    s_cbranch_scc1 K1_LD
    s_waitcnt vmcnt(0)
    s_barrier
    K1_PF:
    s_cmp_lt_u32 s90, 4
    s_cbranch_scc1 K1_DONE
    s_cmp_lg_u32 s90, 4
    s_cbranch_scc1 K1_PF2
    {'buffer_inv sc1' if ACQ[0]==3 else 's_nop 0'}
    K1_PF2:
    s_load_dwordx2 s[4:5], s[0:1], 16
    s_load_dwordx4 s[8:11], s[0:1], 40
    s_lshr_b32 s14, s2, 3
    s_lshl_b32 s14, s14, 2
    s_add_u32 s14, s14, s90
    s_sub_u32 s14, s14, 4
    s_mul_i32 s14, s14, 6400
    s_lshr_b32 s15, s2, 6
    s_lshl_b32 s15, s15, 3
    s_add_u32 s15, s15, s3
    s_mul_i32 s15, s15, 800
    v_lshlrev_b32 v1, 7, v0
    s_waitcnt lgkmcnt(0)
    s_mov_b32 s16, s10
    s_mov_b32 s17, s11
    s_mov_b32 s18, 819200
    s_mov_b32 s19, 0x20000
    s_mov_b32 s6, 819200
    s_mov_b32 s7, 0x20000
    s_mov_b32 s10, 25600
    s_mov_b32 s11, 0x20000
    s_mov_b64 exec, 0xff
    buffer_load_dword v250, v1, s[8:11], s15 offen
    s_mov_b64 exec, -1
    buffer_load_dword v250, v1, s[4:7], s14 offen
    buffer_load_dword v251, v1, s[16:19], s14 offen
    s_branch K1_DONE
    K1_COMP:''')
    AX,AW,EP,FR,AC=8,12,16,32,80
    a(f'''v_and_b32 v1, 31, v0
    v_lshrrev_b32 v2, 5, v0
    s_lshl_b32 s34, s33, 13
    v_lshlrev_b32 v3, 7, v1
    v_add_u32 v3, s34, v3
    v_bfe_u32 v4, v1, 1, 3''')
    for s in range(4): a(f'v_or_b32 v5, {2*s}, v2\nv_xor_b32 v5, v5, v4\nv_lshl_add_u32 v{AX+s}, v5, 4, v3')
    def awcalc(perm):
        a(f'''v_bfe_u32 v4, v0, 2, 2
        v_lshl_add_u32 v3, v2, 3, v4
        v_lshlrev_b32 v3, 8, v3
        v_bfe_u32 v5, v0, 4, 1
        v_lshl_add_u32 v3, v5, 5, v3
        v_add_u32 v3, 0x8000, v3''')
        if perm: a('v_and_b32 v5, 1, v0\nv_lshl_add_u32 v3, v5, 4, v3\nv_bfe_u32 v5, v0, 1, 1\nv_lshl_add_u32 v3, v5, 3, v3')
        else: a('v_and_b32 v5, 3, v0\nv_lshl_add_u32 v3, v5, 3, v3')
        for f in range(4): a(f'v_xor_b32 v5, {f}, v4\nv_lshl_add_u32 v{AW+f}, v5, 6, v3')
    for r in range(128): a(f'v_mov_b32 v{AC+r}, 0')
    a(f'''s_lshl_b32 s34, s29, 3
    s_lshl_b32 s35, s33, 1
    s_add_u32 s34, s34, s35
    s_lshl_b32 s35, s28, 10
    s_add_u32 s34, s34, s35
    s_cmp_eq_u32 s31, 0
    s_mov_b32 s46, 0x1400
    s_mov_b32 s51, {BUF}
    s_cselect_b32 s46, 0xa00, s46
    s_cselect_b32 s47, 0, {KVO}
    s_mul_i32 s44, s34, s46
    s_add_u32 s44, s44, s47
    s_add_u32 s45, s44, s46
    s_lshl_b32 s46, s46, 6
    s_mov_b32 s52, 0x32410
    s_mov_b32 s48, 0
    s_mov_b32 s49, 0
    s_cmp_eq_u32 s31, 2
    s_cbranch_scc1 K1_V''')
    def reads(st,s):
        L=[]; b=FR+24*st
        for tt in range(2): L.append(f'ds_read_b128 {vr(b+4*tt,4)}, v{AX+s} offset:{tt*4096}')
        for f in range(4):
            for t in range(2): L.append(f'ds_read_b64_tr_b16 {vr(b+8+4*f+2*t,2)}, v{AW+f} offset:{(16*s+4*t)*256}')
        return L
    def gemm(tag,sw):
        def mf(st):
            b=FR+24*st; L=[]
            for f in range(4):
                for tt in range(2):
                    x=vr(b+4*tt,4); w=vr(b+8+4*f,4); c=vr(AC+16*(2*f+tt),16)
                    L.append(f'{M16} {c}, {x}, {w}, {c}' if sw else f'{M16} {c}, {w}, {x}, {c}')
            return L
        def step(s,last):
            m=mf(s&1); a('s_waitcnt lgkmcnt(0)')
            if s<3:
                r=reads((s+1)&1,s+1)
                for i in range(8):
                    a(m[i])
                    for x in r[2*i:2*i+2]: a(x)
            elif last:
                for x in m: a(x)
            else:
                a(m[0]); a(f's_add_u32 s48, s48, 1\ns_cmp_eq_u32 s48, 3\ns_cselect_b32 s50, {-2*BUF&0xffffffff}, s51\ns_cselect_b32 s48, 0, s48')
                for i in range(8): a(f'v_add_u32 v{AX+i}, s50, v{AX+i}')
                a(m[1]); a('s_barrier'); r=reads(0,0)
                for i in range(2,8):
                    a(m[i])
                    for x in r[2*(i-2):2*(i-2)+2]: a(x)
        if TCH[0]&1:
            for e in (EP, EP+(7 if sw_q(tag) else 3)): a(f'buffer_load_dword v209, v{e}, s[24:27], s44 offen sc1')
        if TCH[0]&2:
            a(f'''s_load_dwordx2 s[52:53], s[0:1], 56
            v_mul_u32_u24 v212, 81920, v0
            v_mov_b32 v213, 0x1550000
            s_mov_b32 s54, 5242880
            s_mov_b32 s55, 0x20000
            s_waitcnt lgkmcnt(0)
            buffer_load_dword v209, v212, s[52:55], 0 offen sc1
            buffer_load_dword v209, v213, s[24:27], 0 offen sc1''')
        a('s_barrier'); PM(a,0)
        for x in reads(0,0): a(x)
        a(f'K1_{tag}L:')
        for s in range(4): step(s,False)
        a(f's_add_u32 s49, s49, 1\ns_cmp_lt_u32 s49, 9\ns_cbranch_scc1 K1_{tag}L')
        for s in range(4): step(s,True)
        PM(a,1)
    awcalc(True)
    a('s_lshl_b32 s34, s32, 4\nv_add_u32 v3, s34, v2\nv_lshlrev_b32 v6, 4, v1')
    for i in range(8):
        e=EP+i
        a(f'''v_add_u32 v4, {2*i}, v3
        v_mul_u32_u24 v5, 0xcd, v4
        v_lshrrev_b32 v5, 10, v5
        v_mul_lo_u32 v{e}, v5, s46
        v_mul_u32_u24 v5, 5, v5
        v_sub_u32 v4, v4, v5
        v_lshlrev_b32 v4, 2, v4
        v_lshrrev_b32 v4, v4, s52
        v_and_b32 v4, 7, v4
        v_lshl_add_u32 v4, v4, 9, v6
        v_add_u32 v{e}, v{e}, v4''')
    L2E=math.log2(math.e)
    a(f'''s_cmp_eq_u32 s31, 0
    s_cselect_b32 s34, {f2u(L2E/math.sqrt(20))}, 1.0
    s_cmp_eq_u32 s28, 0
    s_cselect_b32 s34, s34, {f2u(L2E)}
    v_mov_b32 v6, s34
    v_mov_b32 v7, s34''')
    gemm('Q',False)
    k=0
    for f in range(4):
        for tt in range(2):
            for b in range(2):
                c=AC+16*(2*f+tt)+8*b; t=FR+4*(k%8); k+=1
                for i in range(4): a(f'v_pk_mul_f32 {vr(c+2*i,2)}, {vr(c+2*i,2)}, v[6:7]')
                for i in range(4): a(f'v_cvt_pk_bf16_f32 v{t+i}, v{c+2*i}, v{c+2*i+1}')
                a(f'buffer_store_dwordx4 {vr(t,4)}, v{EP+2*f+b}, s[24:27], s{44+tt} offen {SM[0]}')
    PE(a,0,24)
    a(('s_branch K1_DONE' if FUSE[0] else 's_endpgm')+'\nK1_V:')
    awcalc(False)
    a('s_lshl_b32 s34, s32, 7\nv_add_u32 v3, s34, v1\nv_mul_u32_u24 v6, 0x140, v2\nv_add_u32 v6, 0xa00, v6')
    for f in range(4):
        e=EP+f
        a(f'''v_add_u32 v4, {32*f}, v3
        v_mul_u32_u24 v5, 0xccd, v4
        v_lshrrev_b32 v5, 16, v5
        v_lshrrev_b32 v7, 1, v5
        v_mul_lo_u32 v{e}, v7, s46
        v_and_b32 v7, 1, v5
        v_mul_u32_u24 v7, 0x500, v7
        v_add_u32 v{e}, v{e}, v7
        v_mul_u32_u24 v5, 20, v5
        v_sub_u32 v4, v4, v5
        v_and_b32 v5, 19, v4
        v_and_b32 v7, 4, v4
        v_lshl_or_b32 v5, v7, 1, v5
        v_bfe_u32 v7, v4, 3, 1
        v_lshl_or_b32 v5, v7, 2, v5
        v_lshl_add_u32 v5, v5, 4, v6
        v_add_u32 v{e}, v{e}, v5''')
    gemm('V',True)
    k=0
    for f in range(4):
        for tt in range(2):
            for hv in range(2):
                c=AC+16*(2*f+tt)+8*hv; t=FR+4*(k%8); k+=1
                for i in range(4): a(f'v_cvt_pk_bf16_f32 v{t+i}, v{c+2*i}, v{c+2*i+1}')
                a(f'buffer_store_dwordx4 {vr(t,4)}, v{EP+f}, s[24:27], s{44+tt} offen offset:{640*hv} {SM[0]}')
    PE(a,0,24)
    if not FUSE[0]: a('K1_END:\ns_endpgm')
    else:
        a('K1_DONE:')
    return a.finish(), 209
def SEAM1(a):
    a(f'''s_waitcnt vmcnt(0)
    v_mov_b32 v14, 163836
    s_cmp_lg_u32 s90, 0
    s_cbranch_scc1 K1_D1
    v_readfirstlane_b32 s48, v210
    s_cmp_eq_u32 s48, 0
    s_cselect_b32 s91, s91, s48
    v_mov_b32 v16, s91
    ds_write_b32 v14, v16
    s_lshl_b32 s48, s2, 2
    s_add_u32 s48, s48, {FO1}
    v_lshl_add_u32 v17, v0, 10, s48
    s_and_b32 s48, s2, {RP[0]-1}
    s_lshl_b32 s48, s48, 10
    s_add_u32 s48, s48, {FO1}
    v_add_u32 v15, s48, v6
    s_waitcnt lgkmcnt(0)
    s_barrier
    s_mov_b64 exec, s[60:61]
    buffer_store_dword v16, v17, s[96:99], 0 offen sc1
    s_mov_b64 exec, -1''')
    if ACQ[0]==1: a('buffer_inv sc1')
    POLL(a,'K2_Q1',4,15,20)
    if ACQ[0]==2: a('buffer_inv sc1\ns_waitcnt vmcnt(0)')
    a('''s_branch K1_D2
    K1_D1:
    s_waitcnt lgkmcnt(0)
    s_barrier
    ds_read_b32 v16, v14
    s_waitcnt lgkmcnt(0)
    v_readfirstlane_b32 s91, v16
    K1_D2:''')
```
